```python
import torch

def _softmax(x, axis=-1):
    return torch.softmax(x, dim=axis)
def _gelu(x):
    return torch.nn.functional.gelu(x, approximate="tanh")
def _silu(x):
    return torch.nn.functional.silu(x)
def _sigmoid(x):
    return torch.sigmoid(x)
def _layernorm(x, axis=-1, eps=1e-5):
    m = x.mean(dim=axis, keepdim=True)
    v = x.var(dim=axis, keepdim=True, unbiased=False)
    return (x - m) / torch.sqrt(v + eps)
def _scatter_add(tgt, idx, src, axis=0):
    return tgt.clone().index_add_(axis, idx, src)
def _segment_sum(src, seg, n):
    out = torch.zeros((n,) + src.shape[1:], dtype=src.dtype)
    return out.index_add_(0, seg, src)
def _pad(x, pw):
    flat = tuple(v for pair in reversed(pw) for v in pair)
    return torch.nn.functional.pad(x, flat)

kernel_name = 'gated_mix__softmax_full_mha__linear_kernel_hedgehog__prompt'

def setup_inputs():

    _w = (lambda a: (lambda t: t.to(torch.bfloat16) if t.is_floating_point() else t)(torch.as_tensor(a)))
    def _A_setup():
        B, S, D = 1, 2048, 640
        return {
            "x": _w((lambda *s: torch.randn(*s, dtype=torch.bfloat16) * 0.05)(B, S, D)),
            "wqkv": _w((lambda *s: torch.randn(*s, dtype=torch.bfloat16) * 0.8)(D, 3 * D)),
            "wo": _w((lambda *s: torch.randn(*s, dtype=torch.bfloat16) * 0.05)(D, D)),
        }
    _A_in = _A_setup()

    def _B_setup():
        B, S, D, H = 1, 2048, 640, 32
        Dh = D // H
        return {
            "x": _w((lambda *s: torch.randn(*s, dtype=torch.bfloat16) * 0.05)(B, S, D)),
            "wqkv": _w((lambda *s: torch.randn(*s, dtype=torch.bfloat16) * 1.6)(D, 3 * D)),
            "w_phi": _w((lambda *s: torch.randn(*s, dtype=torch.bfloat16) * 1.6)(H, Dh, Dh) * (Dh ** -0.5)),
            "wo": _w((lambda *s: torch.randn(*s, dtype=torch.bfloat16) * 0.05)(D, D)),
        }
    _B_in = _B_setup()

    return {
        "A_x": _A_in["x"],
        "A_wqkv": _A_in["wqkv"],
        "A_wo": _A_in["wo"],
        "B_x": _B_in["x"],
        "B_wqkv": _B_in["wqkv"],
        "B_w_phi": _B_in["w_phi"],
        "B_wo": _B_in["wo"],
        "gate_w": _w((lambda *s: torch.randn(*s, dtype=torch.bfloat16) * 0.05)(640) * 16.0),
    }

def reference(A_x, A_wqkv, A_wo, B_x, B_wqkv, B_w_phi, B_wo, gate_w):
    def _A_ref(x, wqkv, wo):
        B, S, D = x.shape
        H = 32; Dh = D // H
        qkv = (lambda x, *d: x.permute(*d))((x @ wqkv).reshape(B, S, 3, H, Dh), 2, 0, 3, 1, 4)
        q, k, v = qkv[0], qkv[1], qkv[2]
        scale = Dh ** -0.5
        scores = torch.einsum("bhqd,bhkd->bhqk", q, k) * scale
        p = _softmax(scores, axis=-1)
        o = torch.einsum("bhqk,bhkd->bhqd", p, v)
        return (lambda x, *d: x.permute(*d))(o, 0, 2, 1, 3).reshape(B, S, D) @ wo

    def _B_ref(x, wqkv, w_phi, wo):
        B, S, D = x.shape
        H = 32; Dh = D // H
        qkv = (lambda x, *d: x.permute(*d))((x @ wqkv).reshape(B, S, 3, H, Dh), 2, 0, 3, 1, 4)
        q, k, v = qkv[0], qkv[1], qkv[2]
        pq = torch.einsum("bhsd,hdf->bhsf", q, w_phi)
        pk = torch.einsum("bhsd,hdf->bhsf", k, w_phi)
        phi_q = torch.concatenate([_softmax(pq, axis=-1), _softmax(-pq, axis=-1)], axis=-1)
        phi_k = torch.concatenate([_softmax(pk, axis=-1), _softmax(-pk, axis=-1)], axis=-1)
        kv = torch.einsum("bhsf,bhsd->bhfd", phi_k, v)
        z  = torch.einsum("bhsf->bhf", phi_k)
        num = torch.einsum("bhqf,bhfd->bhqd", phi_q, kv)
        den = torch.einsum("bhqf,bhf->bhq", phi_q, z)[..., None] + 1e-6
        o = num / den
        return (lambda x, *d: x.permute(*d))(o, 0, 2, 1, 3).reshape(B, S, D) @ wo

    x = A_x
    g = _sigmoid((x * gate_w).sum(-1, keepdims=True))
    a = _A_ref(x, A_wqkv, A_wo)
    b = _B_ref(x, B_wqkv, B_w_phi, B_wo)
    return g * a + (1 - g) * b
```

```python
import re

REG_RE = re.compile(r'(?<![\w.])([vsa])\[(\d+):(\d+)\]|(?<![\w.])([vsa])(\d+)(?![\w\[])|(?<![\w.])(vcc|exec|m0|scc)(?![\w])')

TRANS = ('v_exp_f32', 'v_log_f32', 'v_rcp_f32', 'v_rsq_f32', 'v_sqrt_f32', 'v_sin_f32', 'v_cos_f32',
         'v_exp_f16', 'v_rcp_iflag_f32')


def regs_of(tok):
    out = []
    for m in REG_RE.finditer(tok):
        if m.group(1):
            for i in range(int(m.group(2)), int(m.group(3)) + 1):
                out.append((m.group(1), i))
        elif m.group(4):
            out.append((m.group(4), int(m.group(5))))
        else:
            n = m.group(6)
            if n == 'vcc':
                out += [('x', 'vcc')]
            elif n == 'exec':
                out += [('x', 'exec')]
            else:
                out.append(('x', n))
    return out


def mfma_passes(op):
    if '32x32x16' in op or '32x32x8' in op:
        return 8
    if '16x16x32' in op or '16x16x16' in op:
        return 4
    if '32x32x4' in op:
        return 16
    if '4x4x4' in op:
        return 2
    raise ValueError(op)


class I:
    __slots__ = ('text', 'op', 'dst', 'src', 'kind', 'srcc', 'passes', 'label', 'dpp', 'note', 'ops', 'lds')

    def __init__(self, text):
        self.text = text
        self.label = None
        self.dst = []
        self.src = []
        self.srcc = []
        self.passes = 0
        self.dpp = False
        self.lds = False
        body = text.split(';')[0].strip()
        if body.endswith(':'):
            self.kind = 'label'
            self.label = body[:-1]
            self.op = ''
            return
        if not body or body.startswith('.'):
            self.kind = 'none'
            self.op = ''
            return
        parts = body.split(None, 1)
        op = parts[0]
        self.op = op
        rest = parts[1] if len(parts) > 1 else ''
        ops = []
        depth = 0
        cur = ''
        for ch in rest:
            if ch == '[':
                depth += 1
            if ch == ']':
                depth -= 1
            if ch == ',' and depth == 0:
                ops.append(cur.strip())
                cur = ''
            else:
                cur += ch
        if cur.strip():
            ops.append(cur.strip())
        self.ops = ops
        R = [regs_of(o) for o in ops]
        flat = lambda L: [r for x in L for r in x]
        if op.startswith('v_mfma'):
            self.kind = 'mfma'
            self.passes = mfma_passes(op)
            self.dst = R[0]
            self.src = flat(R[1:])
            self.srcc = R[3]
        elif op.startswith('v_'):
            self.kind = 'trans' if any(op.startswith(t) for t in TRANS) else 'valu'
            self.dpp = ('_dpp' in op) or ('row_' in rest) or ('quad_perm' in rest)
            if op.startswith('v_permlane'):
                self.dst = flat(R[:2])
                self.src = flat(R[:2])
            elif op.startswith('v_cmp'):
                self.dst = R[0]
                self.src = flat(R[1:])
            elif op.startswith(('v_add_co', 'v_sub_co', 'v_addc_co', 'v_subb_co', 'v_subrev_co')):
                self.dst = R[0] + R[1]
                self.src = flat(R[2:])
            elif op.startswith(('v_fmac', 'v_dot2c', 'v_pk_fmac', 'v_writelane')):
                self.dst = R[0]
                self.src = flat(R)
            else:
                self.dst = R[0]
                self.src = flat(R[1:])
                if 'UNUSED_PRESERVE' in rest or op.endswith('_dpp'):
                    self.src = self.src + R[0]
        elif op.startswith('ds_read') or op.startswith('ds_bpermute') or op.startswith('ds_swizzle') or op.startswith('ds_permute'):
            self.kind = 'ds'
            self.dst = R[0]
            self.src = flat(R[1:])
        elif op.startswith('ds_write'):
            self.kind = 'ds'
            self.src = flat(R)
        elif op.startswith('buffer_load') or op.startswith('global_load'):
            self.kind = 'vmem'
            if re.search(r'\blds\b', rest):
                self.lds = True
                self.src = flat(R) + [('x', 'm0')]
            else:
                self.dst = R[0]
                self.src = flat(R[1:])
                if '_d16' in op:
                    self.src = self.src + R[0]
        elif op.startswith('buffer_store') or op.startswith('global_store'):
            self.kind = 'vmem'
            self.src = flat(R)
        elif op.startswith('s_load'):
            self.kind = 'smem'
            self.dst = R[0]
            self.src = flat(R[1:])
        elif op.startswith('s_'):
            self.kind = 'salu'
            if op in ('s_waitcnt', 's_barrier', 's_nop', 's_setprio', 's_endpgm', 's_branch', 's_sleep'):
                pass
            elif op.startswith('s_cbranch'):
                pass
            elif op.startswith('s_cmp') or op.startswith('s_bitcmp'):
                self.src = flat(R)
            elif 'saveexec' in op:
                self.dst = R[0] + [('x', 'exec')]
                self.src = flat(R[1:])
            else:
                self.dst = R[0]
                self.src = flat(R[1:])
        else:
            raise ValueError('unknown instr ' + text)

    def states(self):
        if self.kind in ('label', 'none'):
            return 0
        if self.op == 's_nop':
            return int(self.ops[0], 0) + 1
        return 1


def isv(r):
    return r[0] in ('v', 'a')


def iss(r):
    return r[0] == 's' or r == ('x', 'vcc')


class Asm:
    def __init__(self):
        self.ins = []

    def __call__(self, text):
        for line in text.strip('\n').split('\n'):
            if line.strip():
                self.ins.append(I(line.strip()))

    def label(self, n):
        self.ins.append(I(n + ':'))

    def nop(self, n):
        while n > 0:
            k = min(n, 16)
            self.ins.append(I('s_nop %d' % (k - 1)))
            n -= k


def need_states(prev, cur):
    need = 0
    pk, ck = prev.kind, cur.kind
    pd = set(prev.dst)
    cs = set(cur.src)
    cd = set(cur.dst)
    pvd = {r for r in pd if isv(r)}
    psd = {r for r in pd if iss(r)}
    if pk in ('valu', 'trans'):
        if ck == 'mfma' and pvd & cs:
            need = max(need, 2)
        if pk == 'trans' and ck == 'valu' and pvd & cs:
            need = max(need, 1)
        if ck in ('valu', 'trans') and pvd & cs:
            if cur.dpp or cur.op.startswith('v_permlane'):
                need = max(need, 2)
            if cur.op.startswith(('v_readfirstlane', 'v_readlane')):
                need = max(need, 1)
        if psd:
            if ck in ('valu', 'trans') and psd & cs:
                need = max(need, 4 if cur.op.startswith(('v_readlane', 'v_writelane')) else 2)
            if ck == 'vmem' and psd & cs:
                need = max(need, 5)
            if ck in ('salu', 'smem') and psd & cs:
                need = max(need, 2)
    if prev.op.startswith('v_dot') and cur.op != prev.op and pvd & (cs | cd):
        need = max(need, 3)
    if pk == 'mfma':
        p = prev.passes
        rw = {2: 5, 4: 8, 8: 12, 16: 20}[p]
        if ck in ('valu', 'trans', 'vmem', 'ds'):
            if pvd & (cs | cd):
                need = max(need, rw)
        if ck == 'mfma':
            cc = set(cur.srcc)
            ab = set(cur.src[:len(cur.src) - len(cur.srcc)])
            if pvd & ab:
                need = max(need, rw)
            if pvd & (cc | cd):
                same = (cur.srcc == prev.dst and cur.dst == prev.dst and cur.passes == p)
                if same:
                    need = max(need, 2 if p == 2 else 0)
                else:
                    need = max(need, {2: 4, 4: 6, 8: 10, 16: 18}[p])
        if ck in ('valu', 'trans', 'vmem', 'ds') and set(prev.srcc) & cd:
            need = max(need, {2: 1, 4: 3, 8: 7, 16: 15}[p])
    if pk == 'vmem' and prev.op.startswith(('buffer_store_dwordx3', 'buffer_store_dwordx4', 'global_store_dwordx4')):
        data = set(regs_of(prev.ops[0]))
        if data & cd:
            need = max(need, 2 if ck in ('valu', 'trans') else 1)
    if pk == 'salu' and ('x', 'm0') in pd and cur.lds:
        need = max(need, 1)
    return need


WINDOW = 24


def pad_hazards(ins):
    out = []
    for cur in ins:
        if cur.kind in ('label', 'none') or cur.op == 's_nop':
            out.append(cur)
            continue
        dist = 0
        add = 0
        for prev in reversed(out):
            if dist >= WINDOW:
                break
            if prev.kind in ('label', 'none'):
                continue
            if prev.op != 's_nop':
                n = need_states(prev, cur)
                if n > dist:
                    add = max(add, n - dist)
            dist += prev.states()
        while add > 0:
            k = min(add, 16)
            out.append(I('s_nop %d' % (k - 1)))
            add -= k
        out.append(cur)
    return out


def check_backedges(ins):
    labels = {x.label: i for i, x in enumerate(ins) if x.kind == 'label'}
    errs = []
    for i, x in enumerate(ins):
        if x.op.startswith(('s_cbranch', 's_branch')):
            tgt = x.ops[0]
            if tgt not in labels:
                continue
            j = labels[tgt]
            pre = [y for y in ins[max(0, i - 40):i + 1] if y.kind not in ('label', 'none')]
            post = []
            for y in ins[j:j + 60]:
                if y.kind in ('label', 'none'):
                    continue
                post.append(y)
                if y.op.startswith(('s_branch', 's_endpgm')):
                    break
            seq = pre + post
            for b in range(len(pre), len(seq)):
                cur = seq[b]
                if cur.op == 's_nop':
                    continue
                dist = 0
                for a in range(b - 1, -1, -1):
                    prev = seq[a]
                    if dist >= WINDOW:
                        break
                    if a < len(pre) and prev.op != 's_nop':
                        n = need_states(prev, cur)
                        if n > dist:
                            errs.append('edge %s: %s -> %s needs %d has %d' % (tgt, prev.text, cur.text, n, dist))
                    dist += prev.states()
    return errs


def check_waits(trace, name=''):
    vm = []
    lg = []
    errs = []
    for idx, x in enumerate(trace):
        if x.kind in ('label', 'none'):
            continue
        if x.op == 's_waitcnt':
            t = x.text
            m = re.search(r'vmcnt\((\d+)\)', t)
            if m:
                n = int(m.group(1))
                while len(vm) > n:
                    vm.pop(0)
            m = re.search(r'lgkmcnt\((\d+)\)', t)
            if m:
                n = int(m.group(1))
                if n > 0 and any(k == 'smem' for _, _, k in lg):
                    errs.append('%s[%d] counted lgkmcnt with smem outstanding' % (name, idx))
                while len(lg) > n:
                    lg.pop(0)
            continue
        touched = set(x.src) | set(x.dst)
        for d, t, _ in vm:
            if d & touched:
                errs.append('%s[%d] %s touches pending vm load %s' % (name, idx, x.text, t))
        for d, t, _ in lg:
            if d & touched:
                errs.append('%s[%d] %s touches pending lgkm load %s' % (name, idx, x.text, t))
        if x.kind == 'vmem':
            vm.append((set(x.dst), x.text, 'vm'))
            if len(vm) > 63:
                errs.append('%s[%d] vmcnt overflow' % (name, idx))
        elif x.kind == 'ds':
            lg.append((set(x.dst), x.text, 'ds'))
            if len(lg) > 15:
                errs.append('%s[%d] lgkmcnt overflow >15: %s' % (name, idx, x.text))
                lg.pop(0)
        elif x.kind == 'smem':
            lg.append((set(x.dst), x.text, 'smem'))
    return errs


def render(ins):
    out = []
    for x in ins:
        if x.kind == 'label':
            out.append(x.text)
        else:
            out.append('    ' + x.text)
    return '\n'.join(out) + '\n'
```

```python
import sys
sys.path.insert(0, 'tools')
from asmlib import *
from gen import *

K2_STAGE = 24576
K2_NS = 3
K2_LKV = 0
K2_RING = 3072
K2_LDS = K2_RING + K2_NS * K2_STAGE
K2_THR = 50.0

Q1 = 132
Q2 = 136
MN = 16
S0 = 32
S1 = 48
PP = 64
OA_ = 72
KF = 88
VF = 104
PHQ = 120
TMP = 140
CUR = 5
NXT = 180


def k2_prologue(a):
    a('s_cmp_ge_u32 s2, 256')
    a('s_cbranch_scc1 K2_END')
    a('s_load_dwordx2 s[40:41], s[0:1], 80')
    a('s_and_b32 s42, s2, 7')
    a('s_lshr_b32 s43, s2, 3')
    a('s_lshl_b32 s42, s42, 2')
    a('s_and_b32 s44, s43, 3')
    a('s_add_u32 s20, s42, s44')
    a('s_lshr_b32 s21, s43, 2')
    a('v_lshrrev_b32 v11, 6, v0')
    a('v_mov_b32 v15, v0')
    a('v_and_b32 v0, 63, v0')
    a('v_readfirstlane_b32 s23, v11')
    a('s_waitcnt lgkmcnt(0)')
    srd(a, 12, 40, 41, WS_USED)
    a('s_mul_i32 s42, s20, 98304')
    a('s_mul_i32 s43, s23, 3')
    for j in range(3):
        a(f's_add_u32 s44, s43, {j}')
        a(f's_lshl_b32 s{27+j}, s44, 10')
        a(f's_add_u32 s{27+j}, s{27+j}, {K2_RING}')
        a('s_cmp_lt_u32 s44, 12')
        a(f's_mov_b32 s45, {VA - 12288}')
        a(f's_cselect_b32 s45, {KA}, s45')
        a(f's_lshl_b32 s44, s44, 10')
        a('s_add_u32 s45, s45, s44')
        a(f's_add_u32 s{24+j}, s45, s42')
    a('v_lshlrev_b32 v1, 4, v0')


def k2_dma(a, slot_sgpr_or_imm):
    for j in range(3):
        a(f's_add_u32 m0, s{27+j}, {slot_sgpr_or_imm}')
        a(f'buffer_load_dwordx4 v1, s[12:15], s{24+j} offen lds')
        a(f's_add_u32 s{24+j}, s{24+j}, 12288')


def k2_setup(a):
    k2_dma(a, 0)
    k2_dma(a, K2_STAGE)
    a('s_mul_i32 s42, s20, 53760')
    a(f's_add_u32 s42, s42, {KVP}')
    a('v_lshlrev_b32 v14, 3, v15')
    a('v_cmp_gt_u32 vcc, 420, v15')
    a('s_and_saveexec_b64 s[52:53], vcc')
    for i in range(16):
        a(f'buffer_load_dwordx2 {vr(TMP+2*i,2)}, v14, s[12:15], s42 offen offset:{0}' if i == 0 else
          f'buffer_load_dwordx2 {vr(TMP+2*i,2)}, v14, s[12:15], s42 offen')
        a('s_add_u32 s42, s42, 3360')
    a('s_mov_b64 exec, s[52:53]')
    a('v_and_b32 v11, 31, v0')
    a('v_lshrrev_b32 v12, 5, v0')
    a('s_lshl_b32 s42, s20, 11')
    a('s_lshl_b32 s43, s21, 8')
    a('s_add_u32 s42, s42, s43')
    a('s_lshl_b32 s43, s23, 5')
    a('s_add_u32 s46, s42, s43')
    a('v_add_u32 v13, s46, v11')
    a('v_mul_u32_u24 v14, 48, v13')
    a('v_lshl_add_u32 v8, v12, 4, v14')
    a(f'buffer_load_dwordx4 {vr(TMP+32,4)}, v8, s[12:15], 0 offen')
    a('v_lshl_add_u32 v8, v12, 3, v14')
    a(f'buffer_load_dwordx2 {vr(TMP+36,2)}, v8, s[12:15], 0 offen offset:32')
    a('v_lshlrev_b32 v8, 2, v13')
    a(f's_mov_b32 s43, {QN}')
    a(f'buffer_load_dword v{TMP+38}, v8, s[12:15], s43 offen')
    a('s_lshl_b32 s43, s20, 8')
    a(f's_add_u32 s43, s43, {KMAX}')
    a('v_lshlrev_b32 v8, 2, v0')
    a(f'buffer_load_dword v{TMP+39}, v8, s[12:15], s43 offen')
    a('v_mul_u32_u24 v14, 80, v13')
    a(f's_mov_b32 s43, {PHIQ}')
    a('v_lshl_add_u32 v8, v12, 4, v14')
    a(f'buffer_load_dwordx4 {vr(PHQ,4)}, v8, s[12:15], s43 offen')
    a(f'buffer_load_dwordx4 {vr(PHQ+4,4)}, v8, s[12:15], s43 offen offset:32')
    a('v_lshl_add_u32 v8, v12, 3, v14')
    a(f'buffer_load_dwordx2 {vr(PHQ+8,2)}, v8, s[12:15], s43 offen offset:64')
    a('v_mul_u32_u24 v14, 48, v11')
    a('v_lshl_add_u32 v2, v12, 4, v14')
    a('v_lshl_add_u32 v3, v12, 3, v14')
    a(f'v_add_u32 v3, {32+K2_RING}, v3')
    a(f'v_add_u32 v2, {K2_RING}, v2')
    a('v_and_b32 v8, 15, v0')
    a('v_lshrrev_b32 v8, 2, v8')
    a('v_lshl_add_u32 v8, v12, 2, v8')
    a('v_mul_u32_u24 v8, 48, v8')
    a('v_bfe_u32 v9, v0, 4, 1')
    a('v_lshl_add_u32 v8, v9, 5, v8')
    a('v_and_b32 v9, 3, v0')
    a('v_lshl_add_u32 v4, v9, 3, v8')
    a(f'v_add_u32 v4, {12288+K2_RING}, v4')
    for i in range(16):
        a(f'v_mov_b32 v{OA_+i}, 0')
    a('s_waitcnt vmcnt(0)')
    for i in range(1, 16):
        a(f'v_add_f32 v{TMP}, v{TMP}, v{TMP+2*i}')
        a(f'v_add_f32 v{TMP+1}, v{TMP+1}, v{TMP+2*i+1}')
    a(f'v_cvt_pk_bf16_f32 v{TMP}, v{TMP}, v{TMP+1}')
    a('v_lshlrev_b32 v14, 2, v15')
    a('v_cmp_gt_u32 vcc, 420, v15')
    a('s_and_saveexec_b64 s[52:53], vcc')
    a(f'ds_write_b32 v14, v{TMP} offset:{K2_LKV}')
    a('s_mov_b64 exec, s[52:53]')
    for i in range(4):
        a(f'v_mov_b32 v{Q1+i}, v{TMP+32+i}')
    for i in range(2):
        a(f'v_mov_b32 v{Q2+i}, v{TMP+36+i}')
    km = TMP + 39
    for sh in (8, 4, 2, 1):
        a(f'v_max_f32_dpp v{km}, v{km}, v{km} row_ror:{sh} row_mask:0xf bank_mask:0xf')
    a(f'v_readlane_b32 s42, v{km}, 0')
    a(f'v_readlane_b32 s43, v{km}, 16')
    a(f'v_readlane_b32 s44, v{km}, 32')
    a(f'v_readlane_b32 s45, v{km}, 48')
    a('s_max_u32 s42, s42, s43')
    a('s_max_u32 s44, s44, s45')
    a('s_max_u32 s42, s42, s44')
    a('v_sqrt_f32 v8, s42')
    a(f'v_mul_f32 v8, v8, v{TMP+38}')
    for i in range(16):
        a(f'v_sub_f32 v{MN+i}, 0, v8')
    a('s_waitcnt lgkmcnt(0)')
    a('s_barrier')


def k2_reads_K(a, kf, a1, a2, off):
    a(f'ds_read_b128 {vr(kf,4)}, v{a1} offset:{off}')
    a(f'ds_read_b64 {vr(kf+4,2)}, v{a2} offset:{off}')


def k2_reads_V(a, vf, av, off):
    for j in range(4):
        a(f'ds_read_b64_tr_b16 {vr(vf+2*j,2)}, v{av} offset:{off+384*j}')


def k2_qk(a, s, kf):
    a(f'v_mfma_f32_32x32x16_bf16 {vr(s,16)}, {vr(kf,4)}, {vr(Q1,4)}, {vr(MN,16)}')
    return f'v_mfma_f32_32x32x8_bf16 {vr(s,16)}, {vr(kf+4,2)}, {vr(Q2,2)}, {vr(s,16)}'


def k2_tile(a, j):
    par = j & 1
    S = S1 if par else S0
    Sn = S0 if par else S1
    kf_next = KF + 8 * (1 - par)
    kf_ld = KF + 8 * par
    vf = VF + 8 * par
    vf_ld = VF + 8 * (1 - par)
    a('s_waitcnt lgkmcnt(0)')
    if j + 2 < 8:
        k2_reads_K(a, kf_ld, CUR, CUR + 1, (j + 2) * 1536)
    else:
        k2_reads_K(a, kf_ld, NXT, NXT + 1, (j + 2 - 8) * 1536)
    if j + 1 < 8:
        k2_reads_V(a, vf_ld, CUR + 2, (j + 1) * 1536)
    else:
        k2_reads_V(a, vf_ld, NXT + 2, 0)
    qk2 = k2_qk(a, Sn, kf_next)
    for i in range(4):
        a(f'v_exp_f32 v{S+i}, v{S+i}')
    a(qk2)
    for i in range(4, 8):
        a(f'v_exp_f32 v{S+i}, v{S+i}')
    for i in range(4):
        a(f'v_cvt_pk_bf16_f32 v{PP+i}, v{S+2*i}, v{S+2*i+1}')
    for i in range(8, 12):
        a(f'v_exp_f32 v{S+i}, v{S+i}')
    a(f'v_mfma_f32_32x32x16_bf16 {vr(OA_,16)}, {vr(vf,4)}, {vr(PP,4)}, {vr(OA_,16)}')
    for i in range(12, 16):
        a(f'v_exp_f32 v{S+i}, v{S+i}')
    for i in range(4, 8):
        a(f'v_cvt_pk_bf16_f32 v{PP+i}, v{S+2*i}, v{S+2*i+1}')
    a('s_nop 1')
    a(f'v_mfma_f32_32x32x16_bf16 {vr(OA_,16)}, {vr(vf+4,4)}, {vr(PP+4,4)}, {vr(OA_,16)}')


def k2_stage(a, first):
    if not first:
        a('s_waitcnt vmcnt(0)')
        a('s_barrier')
    a('s_cmp_ge_u32 s33, 6')
    a('s_cbranch_scc1 K2_NODMA%s' % ('F' if first else ''))
    k2_dma(a, 's32')
    a.label('K2_NODMA%s' % ('F' if first else ''))
    for i in range(3):
        a(f'v_add_u32 v{CUR+i}, s30, v{2+i}')
        a(f'v_add_u32 v{NXT+i}, s31, v{2+i}')
    for j in range(8):
        k2_tile(a, j)
    a('s_mov_b32 s34, s30')
    a('s_mov_b32 s30, s31')
    a('s_mov_b32 s31, s32')
    a('s_mov_b32 s32, s34')
    a('s_add_u32 s33, s33, 1')


def k2_norm_store(a, O, eps, colbyte):
    a(f'v_mov_b32 v8, v{O+8}')
    a(f'v_mov_b32 v9, v{O+8}')
    a('v_permlane32_swap_b32 v8, v9')
    if eps:
        a(f'v_add_f32 v9, {f32bits(1e-6)}, v9')
    a('v_rcp_f32 v9, v9')
    for i in range(12):
        a(f'v_mul_f32 v{O+i}, v9, v{O+i}')
    for i in range(6):
        a(f'v_cvt_pk_bf16_f32 v{TMP+i}, v{O+2*i}, v{O+2*i+1}')
    a(f'buffer_store_dwordx2 {vr(TMP,2)}, v10, s[12:15], s47 offen offset:{colbyte}')
    a(f'buffer_store_dwordx2 {vr(TMP+2,2)}, v10, s[12:15], s47 offen offset:{colbyte+16}')
    a('s_mov_b64 s[52:53], exec')
    a('s_mov_b32 exec_hi, 0')
    a(f'buffer_store_dwordx2 {vr(TMP+4,2)}, v10, s[12:15], s47 offen offset:{colbyte+32}')
    a('s_mov_b64 exec, s[52:53]')


def k2_epilogue(a):
    a('s_waitcnt lgkmcnt(0)')
    a('v_and_b32 v11, 31, v0')
    a('v_lshrrev_b32 v12, 5, v0')
    a('s_lshl_b32 s42, s21, 8')
    a('s_lshl_b32 s43, s23, 5')
    a('s_add_u32 s42, s42, s43')
    a('v_add_u32 v13, s42, v11')
    a('v_mul_u32_u24 v10, 2560, v13')
    a('v_lshl_add_u32 v10, v12, 3, v10')
    a('s_mul_i32 s47, s20, 40')
    a(f's_add_u32 s47, s47, {OO}')
    k2_norm_store(a, OA_, False, 0)
    a('v_mul_u32_u24 v14, 80, v11')
    a('v_lshl_add_u32 v8, v12, 4, v14')
    a('v_lshl_add_u32 v9, v12, 3, v14')
    a(f'ds_read_b128 {vr(KF,4)}, v8 offset:{K2_LKV}')
    a(f'ds_read_b128 {vr(KF+4,4)}, v8 offset:{K2_LKV+32}')
    a(f'ds_read_b64 {vr(KF+8,2)}, v9 offset:{K2_LKV+64}')
    a('s_waitcnt lgkmcnt(0)')
    a(f'v_mfma_f32_32x32x16_bf16 {vr(S0,16)}, {vr(KF,4)}, {vr(PHQ,4)}, 0')
    a(f'v_mfma_f32_32x32x16_bf16 {vr(S0,16)}, {vr(KF+4,4)}, {vr(PHQ+4,4)}, {vr(S0,16)}')
    a(f'v_mfma_f32_32x32x8_bf16 {vr(S0,16)}, {vr(KF+8,2)}, {vr(PHQ+8,2)}, {vr(S0,16)}')
    k2_norm_store(a, S0, True, 1280)


def gen_k2(trace=False):
    a = Asm()
    k2_prologue(a)
    k2_setup(a)
    a('s_mov_b32 s30, 0')
    a(f's_mov_b32 s31, {K2_STAGE}')
    a(f's_mov_b32 s32, {2*K2_STAGE}')
    a('s_mov_b32 s33, 0')
    k2_reads_K(a, KF, 2, 3, 0)
    k2_reads_K(a, KF + 8, 2, 3, 1536)
    k2_reads_V(a, VF, 4, 0)
    a('s_waitcnt lgkmcnt(0)')
    a(k2_qk(a, S0, KF))
    k2_stage(a, True)
    if trace:
        k2_stage(a, False)
        k2_stage(a, False)
    else:
        a.label('K2_LOOP')
        k2_stage(a, False)
        a('s_cmp_lt_u32 s33, 8')
        a('s_cbranch_scc1 K2_LOOP')
    k2_epilogue(a)
    a.label('K2_END')
    a('s_endpgm')
    return a


K3_ST = 5120
K3_NS = 5
K3_WAVE = K3_ST * K3_NS
K3_LDS = 4 * K3_WAVE
K3_ACC = 16
K3_FA = 96


def k3_group(a, s):
    slot = s % K3_NS
    out = []
    for j in range(5):
        out.append([f's_add_u32 m0, s30, {slot*K3_ST + j*1024}',
                    f'buffer_load_dwordx4 v{3+j}, s[8:11], s24 offen lds'])
    for rt in range(4):
        out.append([f'buffer_load_dwordx4 {ar(slot*16+rt*4,4)}, v{8+rt}, s[12:15], s25 offen offset:{64*s}'])
    out.append(['s_add_u32 s24, s24, 40960'])
    return out


def k3_tr(a, s, tt):
    slot = s % K3_NS
    fb = K3_FA + (s & 1) * 20 + tt * 4
    off = slot * K3_ST + tt * 8
    a(f'ds_read_b64_tr_b16 {vr(fb,2)}, v12 offset:{off}')
    a(f'ds_read_b64_tr_b16 {vr(fb+2,2)}, v13 offset:{off}')


def gen_k3(trace=False):
    a = Asm()
    a('s_cmp_ge_u32 s2, 256')
    a('s_cbranch_scc1 K3_END')
    a('s_load_dwordx2 s[28:29], s[0:1], 16')
    a('s_load_dwordx2 s[32:33], s[0:1], 48')
    a('s_load_dwordx2 s[36:37], s[0:1], 64')
    a('s_load_dwordx2 s[40:41], s[0:1], 80')
    a('s_and_b32 s42, s2, 7')
    a('s_lshr_b32 s43, s2, 3')
    a('s_lshl_b32 s42, s42, 2')
    a('s_and_b32 s44, s43, 3')
    a('s_add_u32 s20, s42, s44')
    a('s_lshr_b32 s21, s43, 2')
    a('v_lshrrev_b32 v14, 6, v0')
    a('v_and_b32 v0, 63, v0')
    a('v_readfirstlane_b32 s23, v14')
    a('v_and_b32 v1, 15, v0')
    a('v_lshrrev_b32 v2, 4, v0')
    a('s_waitcnt lgkmcnt(0)')
    a('s_cmp_lt_u32 s23, 2')
    a('s_cselect_b32 s42, s28, s32')
    a('s_cselect_b32 s43, s29, s33')
    srd(a, 8, 42, 43, 640 * 1280)
    srd(a, 12, 40, 41, WS_USED)
    srd(a, 16, 36, 37, 2048 * 1280)
    a('s_and_b32 s42, s23, 1')
    a('s_mul_i32 s42, s42, 409600')
    a('s_mul_i32 s43, s21, 160')
    a('s_add_u32 s24, s42, s43')
    a(f's_mul_i32 s30, s23, {K3_WAVE}')
    for j in range(5):
        a(f'v_add_u32 v14, {64*j}, v0')
        a('v_mul_u32_u24 v15, 205, v14')
        a('v_lshrrev_b32 v15, 11, v15')
        a('v_mul_u32_u24 v12, 10, v15')
        a('v_sub_u32 v12, v14, v12')
        a('v_lshrrev_b32 v13, 1, v15')
        a('v_and_b32 v13, 4, v13')
        a('v_xor_b32 v15, v15, v13')
        a('v_mul_u32_u24 v15, 1280, v15')
        a(f'v_lshl_add_u32 v{3+j}, v12, 4, v15')
    a('s_lshl_b32 s42, s20, 6')
    a('v_add_u32 v14, s42, v1')
    a('v_mul_u32_u24 v14, 2560, v14')
    a('v_lshl_add_u32 v8, v2, 4, v14')
    for rt in range(1, 4):
        a(f'v_add_u32 v{8+rt}, {rt*16*2560}, v8')
    a('s_mul_i32 s25, s23, 640')
    a(f's_add_u32 s25, s25, {OO}')
    a('v_lshrrev_b32 v14, 2, v1')
    a('v_and_b32 v15, 3, v1')
    a('v_and_b32 v13, 1, v2')
    a('v_lshl_add_u32 v14, v2, 3, v14')
    a('v_lshl_add_u32 v14, v13, 2, v14')
    a('v_xor_b32 v13, 4, v14')
    a('v_mul_u32_u24 v15, 40, v15')
    a('v_mul_u32_u24 v14, 160, v14')
    a('v_mul_u32_u24 v13, 160, v13')
    a('v_add3_u32 v12, v14, v15, s30')
    a('v_add3_u32 v13, v13, v15, s30')
    for s in range(5):
        for grp in k3_group(a, s):
            for x in grp:
                a(x)
    for i in range(80):
        a(f'v_mov_b32 v{K3_ACC+i}, 0')
    a('s_lshl_b32 s42, s20, 6')
    a('s_lshl_b32 s43, s23, 4')
    a('s_add_u32 s46, s42, s43')
    a('v_add_lshl_u32 v14, s46, v1, 2')
    a(f's_mov_b32 s43, {GG}')
    a('buffer_load_dword v140, v14, s[12:15], s43 offen')
    a('s_waitcnt vmcnt(37)')
    for tt in range(5):
        k3_tr(a, 0, tt)
    for s in range(10):
        if s + 1 < 10:
            issued_hi = min(s + 4, 9)
            rem = 9 * (issued_hi - (s + 1))
            if s + 1 < 4 or (s + 1 == 4):
                rem += 1
            a(f's_waitcnt vmcnt({rem})')
        groups = k3_group(a, s + 5) if s + 5 < 10 else []
        a('s_waitcnt lgkmcnt(0)')
        gi = 0
        for tt in range(5):
            fb = K3_FA + (s & 1) * 20 + tt * 4
            for rt in range(4):
                c = K3_ACC + (tt * 4 + rt) * 4
                a(f'v_mfma_f32_16x16x32_bf16 {vr(c,4)}, {vr(fb,4)}, {ar((s%5)*16+rt*4,4)}, {vr(c,4)}')
            if s + 1 < 10:
                k3_tr(a, s + 1, tt)
            if tt < 5 and gi < len(groups) and gi < 5:
                for x in groups[gi]:
                    a(x)
                gi += 1
        for g in groups[gi:]:
            for x in g:
                a(x)
    a('s_barrier')
    a(f's_mul_i32 s42, s23, {4*5*1024}')
    a('v_lshlrev_b32 v14, 4, v0')
    a('v_add_u32 v15, s42, v14')
    for rt in range(4):
        for tt in range(5):
            c = K3_ACC + (tt * 4 + rt) * 4
            a(f'ds_write_b128 v15, {vr(c,4)} offset:{(rt*5+tt)*1024}')
        a('s_waitcnt lgkmcnt(0)')
    a('s_waitcnt lgkmcnt(0)')
    a('s_barrier')
    a(f's_mul_i32 s42, s23, {5*1024}')
    a('v_add_u32 v15, s42, v14')
    R = 16
    a('v_add_u32 v13, 40960, v15')
    for wv in range(4):
        for tt in range(5):
            a(f'ds_read_b128 {vr(R+(wv*5+tt)*4,4)}, v{15 if wv < 2 else 13} offset:{(wv%2)*20480+tt*1024}')
        a('s_waitcnt lgkmcnt(0)')
    a('v_sub_f32 v141, 1.0, v140')
    for i in range(20):
        a(f'v_add_f32 v{R+i}, v{R+i}, v{R+20+i}')
        a(f'v_add_f32 v{R+40+i}, v{R+40+i}, v{R+60+i}')
        a(f'v_mul_f32 v{R+i}, v140, v{R+i}')
        a(f'v_fmac_f32 v{R+i}, v141, v{R+40+i}')
    for j in range(10):
        a(f'v_cvt_pk_bf16_f32 v{R+20+j}, v{R+2*j}, v{R+2*j+1}')
    a('v_add_u32 v14, s46, v1')
    a('v_mul_u32_u24 v14, 1280, v14')
    a('v_mul_u32_u24 v15, 40, v2')
    a('s_mul_i32 s42, s21, 160')
    a('v_add3_u32 v14, v14, v15, s42')
    a(f'buffer_store_dwordx4 {vr(R+20,4)}, v14, s[16:19], 0 offen')
    a(f'buffer_store_dwordx4 {vr(R+24,4)}, v14, s[16:19], 0 offen offset:16')
    a(f'buffer_store_dwordx2 {vr(R+28,2)}, v14, s[16:19], 0 offen offset:32')
    a.label('K3_END')
    a('s_endpgm')
    return a


def kernels():
    return [
        ('k2_kernel', gen_k2(), {'t': gen_k2(True)}, 256, 512, K2_LDS, 184, 184),
        ('k3_kernel', gen_k3(), {'t': gen_k3(True)}, 256, 256, K3_LDS, 144 + 80, 144),
    ]
```

```python
import sys, struct
sys.path.insert(0, 'tools')
from asmlib import *

NAME = 'gated_mix__softmax_full_mha__linear_kernel_hedgehog__prompt'

QA = 0
KA = 3145728
VA = 6291456
QN = 9437184
KMAX = 9699328
GG = 9707520
PHIQ = 9715712
KVP = 14958592
OO = 16678912
WS_USED = OO + 2048 * 2560


def f32bits(x):
    return struct.unpack('<I', struct.pack('<f', x))[0]


LOG2E = 1.4426950408889634
QSCALE = (20 ** -0.5) * LOG2E


def vr(b, n):
    return 'v[%d:%d]' % (b, b + n - 1)


def ar(b, n):
    return 'a[%d:%d]' % (b, b + n - 1)


def sr(b, n):
    return 's[%d:%d]' % (b, b + n - 1)


def srd(a, s, lo, hi, size):
    a(f's_mov_b32 s{s}, s{lo}')
    a(f's_and_b32 s{s+1}, s{hi}, 0xffff')
    a(f's_mov_b32 s{s+2}, {size}')
    a(f's_mov_b32 s{s+3}, 0x00020000')


K1_ACC = 16
K1_STAGE = 15360
K1_NST = 5
K1_PD = 6
K1_WPHI_LDS = K1_NST * K1_STAGE
K1_LDS = K1_WPHI_LDS + 3200 + 1024


def k1_acc(t, rt):
    return K1_ACC + (t * 2 + rt) * 4


def k1_prologue(a):
    a('s_cmp_ge_u32 s2, 256')
    a('s_cbranch_scc1 K1_END')
    a('s_load_dwordx4 s[28:31], s[0:1], 0')
    a('s_load_dwordx4 s[32:35], s[0:1], 24')
    a('s_load_dwordx2 s[36:37], s[0:1], 40')
    a('s_load_dwordx2 s[38:39], s[0:1], 56')
    a('s_load_dwordx2 s[40:41], s[0:1], 80')
    a('s_and_b32 s20, s2, 1')
    a('s_lshr_b32 s27, s2, 3')
    a('s_bfe_u32 s21, s2, 0x10001')
    a('s_lshl_b32 s21, s21, 3')
    a('s_and_b32 s42, s27, 7')
    a('s_add_u32 s21, s21, s42')
    a('s_bfe_u32 s22, s2, 0x10002')
    a('s_lshl_b32 s22, s22, 2')
    a('s_lshr_b32 s42, s27, 3')
    a('s_add_u32 s22, s22, s42')
    a('v_lshrrev_b32 v11, 6, v0')
    a('v_and_b32 v0, 63, v0')
    a('v_readfirstlane_b32 s23, v11')
    a('v_and_b32 v1, 15, v0')
    a('v_lshrrev_b32 v2, 4, v0')
    a('s_waitcnt lgkmcnt(0)')
    a('s_cmp_eq_u32 s20, 0')
    a('s_mov_b32 s42, s28')
    a('s_mov_b32 s43, s29')
    a('s_cselect_b32 s44, s30, s34')
    a('s_cselect_b32 s45, s31, s35')
    srd(a, 4, 42, 43, 2048 * 1280)
    srd(a, 8, 44, 45, 640 * 3840)
    srd(a, 12, 40, 41, WS_USED)
    a('s_lshl_b32 s42, s21, 7')
    a('s_lshl_b32 s43, s23, 5')
    a('s_add_u32 s46, s42, s43')
    a('v_add_u32 v3, s46, v1')
    a('v_mul_u32_u24 v3, 1280, v3')
    a('v_lshl_add_u32 v3, v2, 4, v3')
    a('v_add_u32 v4, 20480, v3')
    a('s_mul_i32 s47, s22, 160')
    for q in range(4):
        a(f's_add_u32 s42, s23, {4*q}')
        a('s_min_u32 s42, s42, 14')
        a(f's_lshl_b32 s{48+q}, s42, 10')
        a('s_lshl_b32 s42, s42, 6')
        a('v_add_u32 v11, s42, v0')
        a('v_mul_u32_u24 v12, 2185, v11')
        a('v_lshrrev_b32 v12, 16, v12')
        a('v_mul_u32_u24 v13, 30, v12')
        a('v_sub_u32 v13, v11, v13')
        a('v_mul_u32_u24 v14, 205, v13')
        a('v_lshrrev_b32 v14, 11, v14')
        a('v_mul_u32_u24 v15, 10, v14')
        a('v_sub_u32 v15, v13, v15')
        a('v_lshrrev_b32 v11, 1, v12')
        a('v_and_b32 v11, 4, v11')
        a('v_xor_b32 v12, v12, v11')
        a('v_mul_u32_u24 v12, 3840, v12')
        a('v_mul_u32_u24 v14, 1280, v14')
        a('v_lshlrev_b32 v15, 4, v15')
        a('v_add3_u32 v12, v12, v14, v15')
        a(f'v_add_u32 v{5+q}, s47, v12')
    a('v_lshrrev_b32 v11, 2, v1')
    a('v_and_b32 v12, 3, v1')
    a('v_and_b32 v13, 1, v2')
    a('v_lshlrev_b32 v14, 3, v2')
    a('v_add_u32 v14, v14, v11')
    a('v_lshl_add_u32 v15, v13, 2, v14')
    a('v_xor_b32 v11, 4, v15')
    a('v_mul_u32_u24 v12, 40, v12')
    a('v_mul_u32_u24 v15, 480, v15')
    a('v_mul_u32_u24 v11, 480, v11')
    a('v_add_u32 v9, v15, v12')
    a('v_add_u32 v10, v11, v12')


def k1_issue_group(a, slot, interleave=None):
    out = []
    for q in range(4):
        out.append([f's_add_u32 m0, s{48+q}, {slot*K1_STAGE}',
                    f'buffer_load_dwordx4 v{5+q}, s[8:11], s24 offen lds'])
    for rt in range(2):
        out.append([f'buffer_load_dwordx4 {ar(60+slot*8+rt*4,4)}, v{3+rt}, s[4:7], s25 offen'])
    out.append(['s_add_u32 s24, s24, 122880', 's_add_u32 s25, s25, 64'])
    return out


def k1_tr(a, slot, t):
    seg, tt = divmod(t, 5)
    off = slot * K1_STAGE + seg * 160 + tt * 8
    a(f'ds_read_b64_tr_b16 {ar(4*t,2)}, v9 offset:{off}')
    a(f'ds_read_b64_tr_b16 {ar(4*t+2,2)}, v10 offset:{off}')


def k1_step(a, slot, issue, waitn, last):
    if waitn is not None:
        a(f's_waitcnt vmcnt({waitn})')
        a('s_barrier')
    groups = k1_issue_group(a, (slot + 4) % 5) if issue else []
    gi = 0
    for t in range(15):
        if last:
            nout = 2 * min(K1_PD - 1, 14 - t)
        else:
            nout = 2 * (K1_PD - 1)
        a(f's_waitcnt lgkmcnt({nout})')
        for rt in range(2):
            c = k1_acc(t, rt)
            a(f'v_mfma_f32_16x16x32_bf16 {vr(c,4)}, {ar(4*t,4)}, {ar(60+slot*8+rt*4,4)}, {vr(c,4)}')
        tn = t + K1_PD
        if tn < 15:
            k1_tr(a, slot, tn)
        elif not last:
            k1_tr(a, (slot + 1) % 5, tn - 15)
        if t % 2 == 1 and gi < len(groups):
            for s in groups[gi]:
                a(s)
            gi += 1


def k1_main(a, trace=False):
    a('s_mov_b32 s24, 0')
    a('s_mov_b32 s25, 0')
    for st in range(4):
        for grp in k1_issue_group(a, st):
            for s in grp:
                a(s)
    for i in range(120):
        a(f'v_mov_b32 v{K1_ACC+i}, 0')
    a('s_waitcnt vmcnt(18)')
    a('s_barrier')
    for t in range(K1_PD):
        k1_tr(a, 0, t)
    if trace:
        for it in range(3):
            for s in range(5):
                k1_step(a, s, True, 12, False)
    else:
        a('s_mov_b32 s26, 3')
        a.label('K1_LOOP')
        for s in range(5):
            k1_step(a, s, True, 12, False)
        a('s_sub_u32 s26, s26, 1')
        a('s_cmp_lg_u32 s26, 0')
        a('s_cbranch_scc1 K1_LOOP')
    k1_step(a, 0, True, 12, False)
    k1_step(a, 1, False, 12, False)
    k1_step(a, 2, False, 6, False)
    k1_step(a, 3, False, 0, False)
    k1_step(a, 4, False, None, True)


def k1_epi_A(a):
    T = 136
    srd(a, 16, 38, 39, 1280)
    a('s_lshl_b32 s42, s21, 7')
    a('s_lshl_b32 s43, s22, 4')
    a('s_add_u32 s42, s42, s43')
    a('s_lshl_b32 s43, s23, 2')
    a('s_add_u32 s42, s42, s43')
    a('v_add_u32 v11, s42, v2')
    a('v_mul_u32_u24 v12, 80, v1')
    a('v_mul_u32_u24 v13, 1280, v11')
    a('v_add_u32 v13, v13, v12')
    for j in range(5):
        a(f'buffer_load_dwordx4 {vr(200+4*j,4)}, v13, s[4:7], 0 offen offset:{16*j}')
        a(f'buffer_load_dwordx4 {vr(220+4*j,4)}, v12, s[16:19], 0 offen offset:{16*j}')
    a('s_lshl_b32 s42, s22, 2')
    a('v_add_u32 v14, s42, v2')
    a('v_mul_u32_u24 v15, 2048, v14')
    a('v_add3_u32 v15, v15, s46, v1')
    a('v_mul_u32_u24 v5, 48, v15')
    a('v_lshlrev_b32 v6, 2, v15')
    a(f's_mov_b32 s42, {f32bits(QSCALE)}')
    a(f's_mov_b32 s43, {KA}')
    a(f's_mov_b32 s44, {VA}')
    a(f's_mov_b32 s45, {QN}')
    nst = 0
    a('v_mov_b32 v7, 0')
    for rt in range(2):
        for seg in range(3):
            B = T + ((rt * 3 + seg) % 2) * 16
            acc = [k1_acc(seg * 5 + tt, rt) + i for tt in range(5) for i in range(4)]
            if seg == 0:
                for r in acc:
                    a(f'v_mul_f32 v{r}, s42, v{r}')
            if seg < 2:
                a(f'v_mul_f32 v8, v{acc[0]}, v{acc[0]}')
                for r in acc[1:]:
                    a(f'v_fmac_f32 v8, v{r}, v{r}')
            for j in range(10):
                a(f'v_cvt_pk_bf16_f32 v{B+j}, v{acc[2*j]}, v{acc[2*j+1]}')
            if seg == 2:
                a(f'v_mov_b32 v{B+10}, 0x3f80')
            else:
                a(f'v_mov_b32 v{B+10}, 0')
            a(f'v_mov_b32 v{B+11}, 0')
            soff = ['0', 's43', 's44'][seg]
            for j in range(3):
                a(f'buffer_store_dwordx4 {vr(B+4*j,4)}, v5, s[12:15], {soff} offen offset:{rt*768+16*j}')
                nst += 1
            if seg == 0:
                a('v_sqrt_f32 v8, v8')
                a(f'v_mul_f32 v{T+32+rt}, {f32bits(1.005)}, v8')
                a(f'buffer_store_dword v{T+32+rt}, v6, s[12:15], s45 offen offset:{rt*64}')
                nst += 1
            if seg == 1:
                a('v_max_f32 v7, v7, v8')
    for sh in (8, 4, 2, 1):
        a(f'v_max_f32_dpp v7, v7, v7 row_ror:{sh} row_mask:0xf bank_mask:0xf')
    a(f'v_mul_f32 v7, {f32bits(1.01)}, v7')
    a('s_lshl_b32 s42, s21, 2')
    a('s_add_u32 s42, s42, s23')
    a('s_lshl_b32 s42, s42, 2')
    a(f's_add_u32 s42, s42, {KMAX}')
    a('v_lshlrev_b32 v11, 8, v14')
    a('v_cmp_eq_u32 vcc, 0, v1')
    a('s_and_saveexec_b64 s[52:53], vcc')
    a('buffer_store_dword v7, v11, s[12:15], s42 offen')
    nst += 1
    a('s_mov_b64 exec, s[52:53]')
    a(f's_waitcnt vmcnt({nst})')
    a('v_mov_b32 v8, 0')
    for j in range(20):
        a(f'v_dot2_f32_bf16 v8, v{200+j}, v{220+j}, v8')
    for sh in (8, 4, 2, 1):
        a(f'v_add_f32_dpp v8, v8, v8 row_ror:{sh} row_mask:0xf bank_mask:0xf')
    a(f'v_mul_f32 v8, {f32bits(-LOG2E)}, v8')
    a('v_exp_f32 v8, v8')
    a('v_add_f32 v8, 1.0, v8')
    a('v_rcp_f32 v8, v8')
    a('s_lshl_b32 s42, s21, 7')
    a('s_lshl_b32 s43, s22, 4')
    a('s_add_u32 s42, s42, s43')
    a('s_lshl_b32 s43, s23, 2')
    a('s_add_u32 s42, s42, s43')
    a('v_add_lshl_u32 v11, s42, v2, 2')
    a(f's_mov_b32 s43, {GG}')
    a('v_cmp_eq_u32 vcc, 0, v1')
    a('s_and_saveexec_b64 s[52:53], vcc')
    a('buffer_store_dword v8, v11, s[12:15], s43 offen')
    a('s_mov_b64 exec, s[52:53]')


def k1_pre_B(a):
    srd(a, 16, 36, 37, 32 * 800)
    a('s_mul_i32 s42, s22, 3200')
    a('s_lshl_b32 s43, s23, 6')
    a('v_add_u32 v11, s43, v0')
    a('v_lshlrev_b32 v12, 4, v11')
    a('v_add_u32 v13, s42, v12')
    a('v_mov_b32 v140, 0')
    a('v_mov_b32 v141, 0')
    a('v_mov_b32 v142, 0')
    a('v_mov_b32 v143, 0')
    a('v_cmp_gt_u32 vcc, 200, v11')
    a('s_and_saveexec_b64 s[52:53], vcc')
    a(f'buffer_load_dwordx4 {vr(140,4)}, v13, s[16:19], 0 offen')
    a('s_mov_b64 exec, s[52:53]')
    a('s_waitcnt vmcnt(0)')
    a(f'v_add_u32 v12, {K1_WPHI_LDS}, v12')
    a(f'ds_write_b128 v12, {vr(140,4)}')
    a('s_waitcnt lgkmcnt(0)')


def k1_epi_B(a):
    T = 136
    AW = 136
    XB = 186
    P = 196
    E = 216
    PK = 236
    a('s_barrier')
    a('v_lshrrev_b32 v11, 2, v1')
    a('v_and_b32 v12, 3, v1')
    a('v_mul_u32_u24 v13, 800, v2')
    a('v_mul_u32_u24 v11, 40, v11')
    a('v_add_u32 v13, v13, v11')
    a('v_mov_b32 v14, 3200')
    a('v_cmp_eq_u32 vcc, v12, v2')
    a('v_cndmask_b32 v13, v14, v13, vcc')
    a(f'v_add_u32 v13, {K1_WPHI_LDS}, v13')
    cnt = 0
    for tp in range(5):
        for s in range(5):
            off = 4 * s * 40 + 8 * tp
            a(f'ds_read_b64_tr_b16 {vr(AW+tp*10+2*s,2)}, v13 offset:{off}')
            cnt += 1
            if cnt % 10 == 0:
                a('s_waitcnt lgkmcnt(0)')
    a('s_waitcnt lgkmcnt(0)')
    a('s_lshl_b32 s42, s22, 2')
    a('v_add_u32 v14, s42, v2')
    a('v_mul_u32_u24 v15, 2048, v14')
    a('v_add3_u32 v15, v15, s46, v1')
    a('v_mul_u32_u24 v5, 80, v15')
    a(f's_mov_b32 s43, {PHIQ}')
    a('s_lshl_b32 s44, s23, 5')
    a('v_add_u32 v11, s44, v1')
    a('v_lshl_add_u32 v11, v2, 7, v11')
    a('v_mul_u32_u24 v6, 80, v11')
    a('v_mul_u32_u24 v7, 48, v11')
    a(f's_mov_b32 s45, {f32bits(LOG2E)}')
    for rt in range(2):
        for seg in range(2):
            acc = [k1_acc(seg * 5 + tt, rt) + i for tt in range(5) for i in range(4)]
            for j in range(10):
                a(f'v_cvt_pk_bf16_f32 v{XB+j}, v{acc[2*j]}, v{acc[2*j+1]}')
            for tp in range(5):
                d = P + 4 * tp
                a(f'v_mfma_f32_16x16x32_bf16 {vr(d,4)}, {vr(AW+tp*10,4)}, {vr(XB,4)}, 0')
            for tp in range(5):
                d = P + 4 * tp
                a(f'v_mfma_f32_16x16x32_bf16 {vr(d,4)}, {vr(AW+tp*10+4,4)}, {vr(XB+4,4)}, {vr(d,4)}')
            for tp in range(5):
                d = P + 4 * tp
                a(f'v_mfma_f32_16x16x16_bf16 {vr(d,4)}, {vr(AW+tp*10+8,2)}, {vr(XB+8,2)}, {vr(d,4)}')
            a(f'v_max3_f32 v8, v{P}, v{P+1}, v{P+2}')
            a(f'v_min3_f32 v9, v{P}, v{P+1}, v{P+2}')
            for j in range(3, 19, 2):
                a(f'v_max3_f32 v8, v8, v{P+j}, v{P+j+1}')
                a(f'v_min3_f32 v9, v9, v{P+j}, v{P+j+1}')
            a(f'v_max_f32 v8, v8, v{P+19}')
            a(f'v_min_f32 v9, v9, v{P+19}')
            a('v_mul_f32 v8, s45, v8')
            a('v_mul_f32 v9, s45, v9')
            for j in range(20):
                a(f'v_fma_f32 v{E+j}, -v{P+j}, s45, v9')
                a(f'v_fma_f32 v{P+j}, v{P+j}, s45, -v8')
            for j in range(20):
                a(f'v_exp_f32 v{P+j}, v{P+j}')
                a(f'v_exp_f32 v{E+j}, v{E+j}')
            a(f'v_add_f32 v8, v{P}, v{P+1}')
            a(f'v_add_f32 v9, v{E}, v{E+1}')
            for j in range(2, 20):
                a(f'v_add_f32 v8, v8, v{P+j}')
                a(f'v_add_f32 v9, v9, v{E+j}')
            a('v_rcp_f32 v8, v8')
            a('v_rcp_f32 v9, v9')
            for j in range(20):
                a(f'v_mul_f32 v{P+j}, v8, v{P+j}')
                a(f'v_mul_f32 v{E+j}, v9, v{E+j}')
            for j in range(10):
                a(f'v_cvt_pk_bf16_f32 v{PK+j}, v{P+2*j}, v{P+2*j+1}')
                a(f'v_cvt_pk_bf16_f32 v{PK+10+j}, v{E+2*j}, v{E+2*j+1}')
            if seg == 0:
                for j in range(5):
                    a(f'buffer_store_dwordx4 {vr(PK+4*j,4)}, v5, s[12:15], s43 offen offset:{rt*16*80+16*j}')
            else:
                for j in range(5):
                    a(f'ds_write_b128 v6, {vr(PK+4*j,4)} offset:{rt*16*80+16*j}')
        acc = [k1_acc(10 + tt, rt) + i for tt in range(5) for i in range(4)]
        for j in range(10):
            a(f'v_cvt_pk_bf16_f32 v{P+j}, v{acc[2*j]}, v{acc[2*j+1]}')
        a(f'v_mov_b32 v{P+10}, 0x3f80')
        a(f'v_mov_b32 v{P+11}, 0')
        a('s_waitcnt lgkmcnt(0)')
        for j in range(3):
            a(f'ds_write_b128 v7, {vr(P+4*j,4)} offset:{40960+rt*16*48+16*j}')
    a('s_waitcnt lgkmcnt(0)')
    a('s_barrier')
    a('v_lshrrev_b32 v11, 2, v1')
    a('v_and_b32 v12, 3, v1')
    a('v_lshl_add_u32 v11, v2, 3, v11')
    a('s_lshl_b32 s44, s23, 7')
    a('v_add_u32 v11, s44, v11')
    a('v_mul_u32_u24 v13, 80, v11')
    a('v_lshl_add_u32 v13, v12, 3, v13')
    a('v_mul_u32_u24 v14, 48, v11')
    a('v_lshl_add_u32 v14, v12, 3, v14')
    D = 16
    FA = 48
    FB = 64
    for ks in range(4):
        for mt in range(3):
            for hh in range(2):
                a(f'ds_read_b64_tr_b16 {vr(FA+mt*4+2*hh,2)}, v13 offset:{(32*ks+4*hh)*80+32*mt}')
        for nt in range(2):
            for hh in range(2):
                a(f'ds_read_b64_tr_b16 {vr(FB+nt*4+2*hh,2)}, v14 offset:{40960+(32*ks+4*hh)*48+32*nt}')
        a('s_waitcnt lgkmcnt(0)')
        for mt in range(3):
            for nt in range(2):
                d = D + (mt * 2 + nt) * 4
                c = '0' if ks == 0 else vr(d, 4)
                a(f'v_mfma_f32_16x16x32_bf16 {vr(d,4)}, {vr(FA+mt*4,4)}, {vr(FB+nt*4,4)}, {c}')
    a('s_lshl_b32 s42, s22, 2')
    a('s_add_u32 s42, s42, s23')
    a('s_lshl_b32 s42, s42, 4')
    a('s_add_u32 s42, s42, s21')
    a('s_mul_i32 s42, s42, 3360')
    a(f's_add_u32 s42, s42, {KVP}')
    a('v_mul_u32_u24 v11, 160, v1')
    a('v_lshl_add_u32 v11, v2, 4, v11')
    a('v_cmp_gt_u32 s[54:55], 5, v1')
    a('v_cmp_gt_u32 s[56:57], 2, v2')
    a('s_and_b64 s[58:59], s[54:55], s[56:57]')
    for mt in range(3):
        for nt in range(2):
            d = D + (mt * 2 + nt) * 4
            m = None
            if nt == 1 and mt == 2:
                m = 's[58:59]'
            elif nt == 1:
                m = 's[54:55]'
            elif mt == 2:
                m = 's[56:57]'
            if m:
                a(f's_mov_b64 exec, {m}')
            a(f'buffer_store_dwordx4 {vr(d,4)}, v11, s[12:15], s42 offen offset:{nt*16*160+mt*64}')
            if m:
                a('s_mov_b64 exec, -1')


def gen_k1(trace=None):
    a = Asm()
    if trace is None:
        k1_prologue(a)
        a('s_cmp_eq_u32 s20, 0')
        a('s_cbranch_scc1 K1_MAIN')
        k1_pre_B(a)
        a.label('K1_MAIN')
        k1_main(a)
        a('s_cmp_eq_u32 s20, 0')
        a('s_cbranch_scc0 K1_EPIB')
        k1_epi_A(a)
        a('s_branch K1_END')
        a.label('K1_EPIB')
        k1_epi_B(a)
        a.label('K1_END')
        a('s_endpgm')
    else:
        k1_prologue(a)
        if trace == 'B':
            k1_pre_B(a)
        k1_main(a, trace=True)
        if trace == 'A':
            k1_epi_A(a)
        else:
            k1_epi_B(a)
    return a


def kernel_desc(name, nvgpr, accum, nsgpr=100):
    return f""".amdhsa_kernel {name}
  .amdhsa_next_free_vgpr {nvgpr}
  .amdhsa_next_free_sgpr {nsgpr}
  .amdhsa_accum_offset {accum}
  .amdhsa_group_segment_fixed_size 0
  .amdhsa_kernarg_size 88
  .amdhsa_user_sgpr_count 2
  .amdhsa_user_sgpr_kernarg_segment_ptr 1
  .amdhsa_system_sgpr_workgroup_id_x 1
.end_amdhsa_kernel
"""


def finish(a, name, traces):
    ins = pad_hazards(a.ins)
    errs = check_backedges(ins)
    for tn, tr in traces.items():
        errs += check_waits(pad_hazards(tr.ins), name + ':' + tn)
    for e in errs[:40]:
        print('ERR', e, file=sys.stderr)
    if errs:
        print('%d errors in %s' % (len(errs), name), file=sys.stderr)
    return ins


def build(kernels, path):
    hdr = open('cdna_kernels/%s.s.ref' % NAME).read().split('\n')
    head = []
    for l in hdr:
        if l.startswith('; @launch') or l.startswith('; Override'):
            continue
        if not l.startswith(';'):
            break
        head.append(l)
    out = '\n'.join(head) + '\n'
    for (label, a, traces, grid, block, lds, nv, acc) in kernels:
        out += f'; @launch kernel={label} grid=({grid},1,1) block=({block},1,1) lds={lds}\n'
    out += '.amdgcn_target "amdgcn-amd-amdhsa--gfx950"\n.text\n'
    for (label, a, traces, grid, block, lds, nv, acc) in kernels:
        ins = finish(a, label, traces)
        out += f'.globl {label}\n.p2align 8\n.type {label},@function\n{label}:\n'
        out += render(ins)
    out += '.section .rodata,"a"\n'
    for (label, a, traces, grid, block, lds, nv, acc) in kernels:
        out += '.p2align 6\n' + kernel_desc(label, nv, acc)
    open(path, 'w').write(out)


if __name__ == '__main__':
    ks = []
    ks.append(('k1_kernel', gen_k1(), {'A': gen_k1('A'), 'B': gen_k1('B')}, 256, 256, K1_LDS, 360, 256))
    import gen23
    ks += gen23.kernels()
    path = sys.argv[1] if len(sys.argv) > 1 else 'cdna_kernels/%s.s' % NAME
    build(ks, path)
    print('wrote', path)
```

```python
import sys, struct
sys.path.insert(0, 'tools')
from asmlib import *

NAME = 'gated_mix__softmax_full_mha__linear_kernel_hedgehog__prompt'

QA = 0
KA = 3145728
VA = 6291456
QN = 9437184
KMAX = 9699328
GG = 9707520
PHIQ = 9715712
KVP = 14958592
OO = 16678912
WS_USED = OO + 2048 * 2560


STAMPS = False
EXP = set()
STAMP_BASE = 24 << 20
WS_SRD = WS_USED


def stamp(a, idx):
    if STAMPS:
        a(f's_memtime s[{64+2*idx}:{65+2*idx}]')


def stamp_flush(a, kidx, n, wave_sgpr='s23'):
    if not STAMPS:
        return
    a('s_waitcnt lgkmcnt(0)')
    a('s_lshl_b32 s62, s2, 4')
    a(f's_add_u32 s62, s62, {wave_sgpr}')
    a('s_lshl_b32 s62, s62, 6')
    a(f's_add_u32 s62, s62, {STAMP_BASE + kidx * (1 << 20)}')
    a('v_mov_b32 v1, 0')
    a('s_mov_b64 exec, 1')
    for i in range(n):
        a(f'v_mov_b32 v2, s{64+2*i}')
        a(f'buffer_store_dword v2, v1, s[12:15], s62 offen offset:{4*i}')
    a('s_waitcnt vmcnt(0)')


def f32bits(x):
    return struct.unpack('<I', struct.pack('<f', x))[0]


LOG2E = 1.4426950408889634
QSCALE = (20 ** -0.5) * LOG2E


def vr(b, n):
    return 'v[%d:%d]' % (b, b + n - 1)


def ar(b, n):
    return 'a[%d:%d]' % (b, b + n - 1)


def sr(b, n):
    return 's[%d:%d]' % (b, b + n - 1)


def G_WS():
    return (32 << 20) if STAMPS else WS_USED


def srd(a, s, lo, hi, size):
    a(f's_mov_b32 s{s}, s{lo}')
    a(f's_and_b32 s{s+1}, s{hi}, 0xffff')
    a(f's_mov_b32 s{s+2}, {size}')
    a(f's_mov_b32 s{s+3}, 0x00020000')


K1_ACC = 16
K1_STAGE = 15360
K1_NST = 5
K1_PD = 6
K1_WPHI_LDS = K1_NST * K1_STAGE
K1_LDS = K1_WPHI_LDS + 3200 + 1024


def k1_acc(t, rt):
    return K1_ACC + (t * 2 + rt) * 4


def k1_prologue(a):
    a('s_cmp_ge_u32 s2, 256')
    a('s_cbranch_scc1 K1_END')
    a('s_load_dwordx4 s[28:31], s[0:1], 0')
    a('s_load_dwordx4 s[32:35], s[0:1], 24')
    a('s_load_dwordx2 s[36:37], s[0:1], 40')
    a('s_load_dwordx2 s[38:39], s[0:1], 56')
    a('s_load_dwordx2 s[40:41], s[0:1], 80')
    a('s_and_b32 s20, s2, 1')
    a('s_lshr_b32 s27, s2, 3')
    a('s_bfe_u32 s21, s2, 0x10001')
    a('s_lshl_b32 s21, s21, 3')
    a('s_and_b32 s42, s27, 7')
    a('s_add_u32 s21, s21, s42')
    a('s_bfe_u32 s22, s2, 0x10002')
    a('s_lshl_b32 s22, s22, 2')
    a('s_lshr_b32 s42, s27, 3')
    a('s_add_u32 s22, s22, s42')
    a('v_lshrrev_b32 v11, 6, v0')
    a('v_and_b32 v0, 63, v0')
    a('v_readfirstlane_b32 s23, v11')
    a('v_and_b32 v1, 15, v0')
    a('v_lshrrev_b32 v2, 4, v0')
    a('s_waitcnt lgkmcnt(0)')
    a('s_cmp_eq_u32 s20, 0')
    a('s_mov_b32 s42, s28')
    a('s_mov_b32 s43, s29')
    a('s_cselect_b32 s44, s30, s34')
    a('s_cselect_b32 s45, s31, s35')
    srd(a, 4, 42, 43, 2048 * 1280)
    srd(a, 8, 44, 45, 640 * 3840)
    srd(a, 12, 40, 41, G_WS())
    a('s_lshl_b32 s42, s21, 7')
    a('s_lshl_b32 s43, s23, 5')
    a('s_add_u32 s46, s42, s43')
    a('v_add_u32 v3, s46, v1')
    a('v_mul_u32_u24 v3, 1280, v3')
    a('v_lshl_add_u32 v3, v2, 4, v3')
    a('v_add_u32 v4, 20480, v3')
    a('s_mul_i32 s47, s22, 160')
    for q in range(4):
        a(f's_add_u32 s42, s23, {4*q}')
        a('s_min_u32 s42, s42, 14')
        a(f's_lshl_b32 s{48+q}, s42, 10')
        a('s_lshl_b32 s42, s42, 6')
        a('v_add_u32 v11, s42, v0')
        a('v_mul_u32_u24 v12, 2185, v11')
        a('v_lshrrev_b32 v12, 16, v12')
        a('v_mul_u32_u24 v13, 30, v12')
        a('v_sub_u32 v13, v11, v13')
        a('v_mul_u32_u24 v14, 205, v13')
        a('v_lshrrev_b32 v14, 11, v14')
        a('v_mul_u32_u24 v15, 10, v14')
        a('v_sub_u32 v15, v13, v15')
        a('v_lshrrev_b32 v11, 1, v12')
        a('v_and_b32 v11, 4, v11')
        a('v_xor_b32 v12, v12, v11')
        a('v_mul_u32_u24 v12, 3840, v12')
        a('v_mul_u32_u24 v14, 1280, v14')
        a('v_lshlrev_b32 v15, 4, v15')
        a('v_add3_u32 v12, v12, v14, v15')
        a(f'v_add_u32 v{5+q}, s47, v12')
    a('v_lshrrev_b32 v11, 2, v1')
    a('v_and_b32 v12, 3, v1')
    a('v_and_b32 v13, 1, v2')
    a('v_lshlrev_b32 v14, 3, v2')
    a('v_add_u32 v14, v14, v11')
    a('v_lshl_add_u32 v15, v13, 2, v14')
    a('v_xor_b32 v11, 4, v15')
    a('v_mul_u32_u24 v12, 40, v12')
    a('v_mul_u32_u24 v15, 480, v15')
    a('v_mul_u32_u24 v11, 480, v11')
    a('v_add_u32 v9, v15, v12')
    a('v_add_u32 v10, v11, v12')


def k1_issue_group(a, slot, interleave=None):
    out = []
    for q in range(4):
        out.append([f's_add_u32 m0, s{48+q}, {slot*K1_STAGE}',
                    f'buffer_load_dwordx4 v{5+q}, s[8:11], s24 offen lds'])
    for rt in range(2):
        out.append([f'buffer_load_dwordx4 {ar(60+slot*8+rt*4,4)}, v{3+rt}, s[4:7], s25 offen'])
    out.append(['s_add_u32 s24, s24, 122880', 's_add_u32 s25, s25, 64'])
    return out


def k1_tr(a, slot, t):
    seg, tt = divmod(t, 5)
    off = slot * K1_STAGE + seg * 160 + tt * 8
    a(f'ds_read_b64_tr_b16 {ar(4*t,2)}, v9 offset:{off}')
    a(f'ds_read_b64_tr_b16 {ar(4*t+2,2)}, v10 offset:{off}')


def k1_step(a, slot, issue, waitn, last):
    if waitn is not None:
        a(f's_waitcnt vmcnt({waitn})')
        a('s_barrier')
    groups = k1_issue_group(a, (slot + 4) % 5) if issue else []
    if 'nodma' in EXP:
        groups = []
    if 'nox' in EXP:
        groups = [g for g in groups if 'lds' in g[-1] or 's_add' in g[-1]]
    gi = 0
    for t in range(15):
        if last:
            nout = 2 * min(K1_PD - 1, 14 - t)
        else:
            nout = 2 * (K1_PD - 1)
        a(f's_waitcnt lgkmcnt({nout})')
        for rt in range(2):
            c = k1_acc(t, rt)
            if 'nomfma' not in EXP:
                a(f'v_mfma_f32_16x16x32_bf16 {vr(c,4)}, {ar(4*t,4)}, {ar(60+slot*8+rt*4,4)}, {vr(c,4)}')
        tn = t + K1_PD
        if tn < 15:
            k1_tr(a, slot, tn)
        elif not last:
            k1_tr(a, (slot + 1) % 5, tn - 15)
        if t % 2 == 1 and gi < len(groups):
            for s in groups[gi]:
                a(s)
            gi += 1


def k1_main(a, trace=False):
    a('s_mov_b32 s24, 0')
    a('s_mov_b32 s25, 0')
    stamp(a, 1)
    for st in range(4):
        for grp in k1_issue_group(a, st):
            for s in grp:
                a(s)
    for i in range(120):
        a(f'v_mov_b32 v{K1_ACC+i}, 0')
    a('s_waitcnt vmcnt(18)')
    a('s_barrier')
    stamp(a, 2)
    for t in range(K1_PD):
        k1_tr(a, 0, t)
    if trace:
        for it in range(3):
            for s in range(5):
                k1_step(a, s, True, 12, False)
    else:
        a('s_mov_b32 s26, 3')
        a.label('K1_LOOP')
        for s in range(5):
            k1_step(a, s, True, 12, False)
        a('s_sub_u32 s26, s26, 1')
        a('s_cmp_lg_u32 s26, 0')
        a('s_cbranch_scc1 K1_LOOP')
    k1_step(a, 0, True, 12, False)
    k1_step(a, 1, False, 12, False)
    k1_step(a, 2, False, 6, False)
    k1_step(a, 3, False, 0, False)
    k1_step(a, 4, False, None, True)


def k1_epi_A(a):
    T = 136
    srd(a, 16, 38, 39, 1280)
    a('s_lshl_b32 s42, s21, 7')
    a('s_lshl_b32 s43, s22, 4')
    a('s_add_u32 s42, s42, s43')
    a('s_lshl_b32 s43, s23, 2')
    a('s_add_u32 s42, s42, s43')
    a('v_add_u32 v11, s42, v2')
    a('v_mul_u32_u24 v12, 80, v1')
    a('v_mul_u32_u24 v13, 1280, v11')
    a('v_add_u32 v13, v13, v12')
    for j in range(5):
        a(f'buffer_load_dwordx4 {vr(200+4*j,4)}, v13, s[4:7], 0 offen offset:{16*j}')
        a(f'buffer_load_dwordx4 {vr(220+4*j,4)}, v12, s[16:19], 0 offen offset:{16*j}')
    a('s_lshl_b32 s42, s22, 2')
    a('v_add_u32 v14, s42, v2')
    a('v_mul_u32_u24 v15, 2048, v14')
    a('v_add3_u32 v15, v15, s46, v1')
    a('v_mul_u32_u24 v5, 48, v15')
    a('v_lshlrev_b32 v6, 2, v15')
    a(f's_mov_b32 s42, {f32bits(QSCALE)}')
    a(f's_mov_b32 s43, {KA}')
    a(f's_mov_b32 s44, {VA}')
    a(f's_mov_b32 s45, {QN}')
    nst = 0
    a('v_mov_b32 v7, 0')
    for rt in range(2):
        for seg in range(3):
            B = T + ((rt * 3 + seg) % 2) * 16
            acc = [k1_acc(seg * 5 + tt, rt) + i for tt in range(5) for i in range(4)]
            if seg == 0:
                for r in acc:
                    a(f'v_mul_f32 v{r}, s42, v{r}')
            if seg < 2:
                a(f'v_mul_f32 v8, v{acc[0]}, v{acc[0]}')
                for r in acc[1:]:
                    a(f'v_fmac_f32 v8, v{r}, v{r}')
            for j in range(10):
                a(f'v_cvt_pk_bf16_f32 v{B+j}, v{acc[2*j]}, v{acc[2*j+1]}')
            if seg == 2:
                a(f'v_mov_b32 v{B+10}, 0x3f80')
            else:
                a(f'v_mov_b32 v{B+10}, 0')
            a(f'v_mov_b32 v{B+11}, 0')
            soff = ['0', 's43', 's44'][seg]
            for j in range(3):
                a(f'buffer_store_dwordx4 {vr(B+4*j,4)}, v5, s[12:15], {soff} offen offset:{rt*768+16*j}')
                nst += 1
            if seg == 0:
                a('v_sqrt_f32 v8, v8')
                a(f'v_mul_f32 v{T+32+rt}, {f32bits(1.005)}, v8')
                a(f'buffer_store_dword v{T+32+rt}, v6, s[12:15], s45 offen offset:{rt*64}')
                nst += 1
            if seg == 1:
                a('v_max_f32 v7, v7, v8')
    for sh in (8, 4, 2, 1):
        a(f'v_max_f32_dpp v7, v7, v7 row_ror:{sh} row_mask:0xf bank_mask:0xf')
    a(f'v_mul_f32 v7, {f32bits(1.01)}, v7')
    a('s_lshl_b32 s42, s21, 2')
    a('s_add_u32 s42, s42, s23')
    a('s_lshl_b32 s42, s42, 2')
    a(f's_add_u32 s42, s42, {KMAX}')
    a('v_lshlrev_b32 v11, 8, v14')
    a('v_cmp_eq_u32 vcc, 0, v1')
    a('s_and_saveexec_b64 s[52:53], vcc')
    a('buffer_store_dword v7, v11, s[12:15], s42 offen')
    nst += 1
    a('s_mov_b64 exec, s[52:53]')
    a(f's_waitcnt vmcnt({nst})')
    a('v_mov_b32 v8, 0')
    for j in range(20):
        a(f'v_dot2_f32_bf16 v8, v{200+j}, v{220+j}, v8')
    for sh in (8, 4, 2, 1):
        a(f'v_add_f32_dpp v8, v8, v8 row_ror:{sh} row_mask:0xf bank_mask:0xf')
    a(f'v_mul_f32 v8, {f32bits(-LOG2E)}, v8')
    a('v_exp_f32 v8, v8')
    a('v_add_f32 v8, 1.0, v8')
    a('v_rcp_f32 v8, v8')
    a('s_lshl_b32 s42, s21, 7')
    a('s_lshl_b32 s43, s22, 4')
    a('s_add_u32 s42, s42, s43')
    a('s_lshl_b32 s43, s23, 2')
    a('s_add_u32 s42, s42, s43')
    a('v_add_lshl_u32 v11, s42, v2, 2')
    a(f's_mov_b32 s43, {GG}')
    a('v_cmp_eq_u32 vcc, 0, v1')
    a('s_and_saveexec_b64 s[52:53], vcc')
    a('buffer_store_dword v8, v11, s[12:15], s43 offen')
    a('s_mov_b64 exec, s[52:53]')


def k1_pre_B(a):
    srd(a, 16, 36, 37, 32 * 800)
    a('s_mul_i32 s42, s22, 3200')
    a('s_lshl_b32 s43, s23, 6')
    a('v_add_u32 v11, s43, v0')
    a('v_lshlrev_b32 v12, 4, v11')
    a('v_add_u32 v13, s42, v12')
    a('v_mov_b32 v140, 0')
    a('v_mov_b32 v141, 0')
    a('v_mov_b32 v142, 0')
    a('v_mov_b32 v143, 0')
    a('v_cmp_gt_u32 vcc, 200, v11')
    a('s_and_saveexec_b64 s[52:53], vcc')
    a(f'buffer_load_dwordx4 {vr(140,4)}, v13, s[16:19], 0 offen')
    a('s_mov_b64 exec, s[52:53]')
    a('s_waitcnt vmcnt(0)')
    a(f'v_add_u32 v12, {K1_WPHI_LDS}, v12')
    a(f'ds_write_b128 v12, {vr(140,4)}')
    a('s_waitcnt lgkmcnt(0)')


def k1_epi_B(a):
    T = 136
    AW = 136
    XB = 186
    P = 196
    E = 216
    PK = 236
    a('s_barrier')
    a('v_lshrrev_b32 v11, 2, v1')
    a('v_and_b32 v12, 3, v1')
    a('v_mul_u32_u24 v13, 800, v2')
    a('v_mul_u32_u24 v11, 40, v11')
    a('v_add_u32 v13, v13, v11')
    a('v_mov_b32 v14, 3200')
    a('v_cmp_eq_u32 vcc, v12, v2')
    a('v_cndmask_b32 v13, v14, v13, vcc')
    a(f'v_add_u32 v13, {K1_WPHI_LDS}, v13')
    cnt = 0
    for tp in range(5):
        for s in range(5):
            off = 4 * s * 40 + 8 * tp
            a(f'ds_read_b64_tr_b16 {vr(AW+tp*10+2*s,2)}, v13 offset:{off}')
            cnt += 1
            if cnt % 10 == 0:
                a('s_waitcnt lgkmcnt(0)')
    a('s_waitcnt lgkmcnt(0)')
    a('s_lshl_b32 s42, s22, 2')
    a('v_add_u32 v14, s42, v2')
    a('v_mul_u32_u24 v15, 2048, v14')
    a('v_add3_u32 v15, v15, s46, v1')
    a('v_mul_u32_u24 v5, 80, v15')
    a(f's_mov_b32 s43, {PHIQ}')
    a('s_lshl_b32 s44, s23, 5')
    a('v_add_u32 v11, s44, v1')
    a('v_lshl_add_u32 v11, v2, 7, v11')
    a('v_mul_u32_u24 v6, 80, v11')
    a('v_mul_u32_u24 v7, 48, v11')
    a(f's_mov_b32 s45, {f32bits(LOG2E)}')
    for rt in range(2):
        for seg in range(2):
            acc = [k1_acc(seg * 5 + tt, rt) + i for tt in range(5) for i in range(4)]
            for j in range(10):
                a(f'v_cvt_pk_bf16_f32 v{XB+j}, v{acc[2*j]}, v{acc[2*j+1]}')
            for tp in range(5):
                d = P + 4 * tp
                a(f'v_mfma_f32_16x16x32_bf16 {vr(d,4)}, {vr(AW+tp*10,4)}, {vr(XB,4)}, 0')
            for tp in range(5):
                d = P + 4 * tp
                a(f'v_mfma_f32_16x16x32_bf16 {vr(d,4)}, {vr(AW+tp*10+4,4)}, {vr(XB+4,4)}, {vr(d,4)}')
            for tp in range(5):
                d = P + 4 * tp
                a(f'v_mfma_f32_16x16x16_bf16 {vr(d,4)}, {vr(AW+tp*10+8,2)}, {vr(XB+8,2)}, {vr(d,4)}')
            a(f'v_max3_f32 v8, v{P}, v{P+1}, v{P+2}')
            a(f'v_min3_f32 v9, v{P}, v{P+1}, v{P+2}')
            for j in range(3, 19, 2):
                a(f'v_max3_f32 v8, v8, v{P+j}, v{P+j+1}')
                a(f'v_min3_f32 v9, v9, v{P+j}, v{P+j+1}')
            a(f'v_max_f32 v8, v8, v{P+19}')
            a(f'v_min_f32 v9, v9, v{P+19}')
            a('v_mul_f32 v8, s45, v8')
            a('v_mul_f32 v9, s45, v9')
            for j in range(20):
                a(f'v_fma_f32 v{E+j}, -v{P+j}, s45, v9')
                a(f'v_fma_f32 v{P+j}, v{P+j}, s45, -v8')
            for j in range(20):
                a(f'v_exp_f32 v{P+j}, v{P+j}')
                a(f'v_exp_f32 v{E+j}, v{E+j}')
            a(f'v_add_f32 v8, v{P}, v{P+1}')
            a(f'v_add_f32 v9, v{E}, v{E+1}')
            for j in range(2, 20):
                a(f'v_add_f32 v8, v8, v{P+j}')
                a(f'v_add_f32 v9, v9, v{E+j}')
            a('v_rcp_f32 v8, v8')
            a('v_rcp_f32 v9, v9')
            for j in range(20):
                a(f'v_mul_f32 v{P+j}, v8, v{P+j}')
                a(f'v_mul_f32 v{E+j}, v9, v{E+j}')
            for j in range(10):
                a(f'v_cvt_pk_bf16_f32 v{PK+j}, v{P+2*j}, v{P+2*j+1}')
                a(f'v_cvt_pk_bf16_f32 v{PK+10+j}, v{E+2*j}, v{E+2*j+1}')
            if seg == 0:
                for j in range(5):
                    a(f'buffer_store_dwordx4 {vr(PK+4*j,4)}, v5, s[12:15], s43 offen offset:{rt*16*80+16*j}')
            else:
                for j in range(5):
                    a(f'ds_write_b128 v6, {vr(PK+4*j,4)} offset:{rt*16*80+16*j}')
        acc = [k1_acc(10 + tt, rt) + i for tt in range(5) for i in range(4)]
        for j in range(10):
            a(f'v_cvt_pk_bf16_f32 v{P+j}, v{acc[2*j]}, v{acc[2*j+1]}')
        a(f'v_mov_b32 v{P+10}, 0x3f80')
        a(f'v_mov_b32 v{P+11}, 0')
        a('s_waitcnt lgkmcnt(0)')
        for j in range(3):
            a(f'ds_write_b128 v7, {vr(P+4*j,4)} offset:{40960+rt*16*48+16*j}')
    a('s_waitcnt lgkmcnt(0)')
    a('s_barrier')
    a('v_lshrrev_b32 v11, 2, v1')
    a('v_and_b32 v12, 3, v1')
    a('v_lshl_add_u32 v11, v2, 3, v11')
    a('s_lshl_b32 s44, s23, 7')
    a('v_add_u32 v11, s44, v11')
    a('v_mul_u32_u24 v13, 80, v11')
    a('v_lshl_add_u32 v13, v12, 3, v13')
    a('v_mul_u32_u24 v14, 48, v11')
    a('v_lshl_add_u32 v14, v12, 3, v14')
    D = 16
    FA = 48
    FB = 64
    for ks in range(4):
        for mt in range(3):
            for hh in range(2):
                a(f'ds_read_b64_tr_b16 {vr(FA+mt*4+2*hh,2)}, v13 offset:{(32*ks+4*hh)*80+32*mt}')
        for nt in range(2):
            for hh in range(2):
                a(f'ds_read_b64_tr_b16 {vr(FB+nt*4+2*hh,2)}, v14 offset:{40960+(32*ks+4*hh)*48+32*nt}')
        a('s_waitcnt lgkmcnt(0)')
        for mt in range(3):
            for nt in range(2):
                d = D + (mt * 2 + nt) * 4
                c = '0' if ks == 0 else vr(d, 4)
                a(f'v_mfma_f32_16x16x32_bf16 {vr(d,4)}, {vr(FA+mt*4,4)}, {vr(FB+nt*4,4)}, {c}')
    a('s_lshl_b32 s42, s22, 2')
    a('s_add_u32 s42, s42, s23')
    a('s_lshl_b32 s42, s42, 4')
    a('s_add_u32 s42, s42, s21')
    a('s_mul_i32 s42, s42, 3360')
    a(f's_add_u32 s42, s42, {KVP}')
    a('v_mul_u32_u24 v11, 160, v1')
    a('v_lshl_add_u32 v11, v2, 4, v11')
    a('v_cmp_gt_u32 s[54:55], 5, v1')
    a('v_cmp_gt_u32 s[56:57], 2, v2')
    a('s_and_b64 s[58:59], s[54:55], s[56:57]')
    for mt in range(3):
        for nt in range(2):
            d = D + (mt * 2 + nt) * 4
            m = None
            if nt == 1 and mt == 2:
                m = 's[58:59]'
            elif nt == 1:
                m = 's[54:55]'
            elif mt == 2:
                m = 's[56:57]'
            if m:
                a(f's_mov_b64 exec, {m}')
            a(f'buffer_store_dwordx4 {vr(d,4)}, v11, s[12:15], s42 offen offset:{nt*16*160+mt*64}')
            if m:
                a('s_mov_b64 exec, -1')


def gen_k1(trace=None):
    a = Asm()
    if trace is None:
        stamp(a, 0)
        k1_prologue(a)
        a('s_cmp_eq_u32 s20, 0')
        a('s_cbranch_scc1 K1_MAIN')
        k1_pre_B(a)
        a.label('K1_MAIN')
        k1_main(a)
        stamp(a, 3)
        a('s_cmp_eq_u32 s20, 0')
        a('s_cbranch_scc0 K1_EPIB')
        k1_epi_A(a)
        a('s_branch K1_FIN')
        a.label('K1_EPIB')
        k1_epi_B(a)
        a.label('K1_FIN')
        stamp(a, 4)
        if STAMPS:
            a('s_waitcnt vmcnt(0)')
        stamp(a, 5)
        stamp_flush(a, 0, 6)
        a.label('K1_END')
        a('s_endpgm')
    else:
        k1_prologue(a)
        if trace == 'B':
            k1_pre_B(a)
        k1_main(a, trace=True)
        if trace == 'A':
            k1_epi_A(a)
        else:
            k1_epi_B(a)
    return a


def kernel_desc(name, nvgpr, accum, nsgpr=100):
    return f""".amdhsa_kernel {name}
  .amdhsa_next_free_vgpr {nvgpr}
  .amdhsa_next_free_sgpr {nsgpr}
  .amdhsa_accum_offset {accum}
  .amdhsa_group_segment_fixed_size 0
  .amdhsa_kernarg_size 88
  .amdhsa_user_sgpr_count 2
  .amdhsa_user_sgpr_kernarg_segment_ptr 1
  .amdhsa_system_sgpr_workgroup_id_x 1
.end_amdhsa_kernel
"""


def finish(a, name, traces):
    fl = ''
    for f in ('sc0', 'sc1', 'nt'):
        if 'st_' + f in EXP:
            fl += ' ' + f
    if fl:
        for x in a.ins:
            if x.op.startswith('buffer_store'):
                x.text = x.text + fl
    ins = pad_hazards(a.ins)
    errs = check_backedges(ins)
    for tn, tr in traces.items():
        errs += check_waits(pad_hazards(tr.ins), name + ':' + tn)
    for e in errs[:40]:
        print('ERR', e, file=sys.stderr)
    if errs:
        print('%d errors in %s' % (len(errs), name), file=sys.stderr)
    return ins


def build(kernels, path):
    hdr = open('cdna_kernels/%s.s.ref' % NAME).read().split('\n')
    head = []
    for l in hdr:
        if l.startswith('; @launch') or l.startswith('; Override'):
            continue
        if not l.startswith(';'):
            break
        head.append(l)
    out = '\n'.join(head) + '\n'
    for (label, a, traces, grid, block, lds, nv, acc) in kernels:
        out += f'; @launch kernel={label} grid=({grid},1,1) block=({block},1,1) lds={lds}\n'
    out += '.amdgcn_target "amdgcn-amd-amdhsa--gfx950"\n.text\n'
    for (label, a, traces, grid, block, lds, nv, acc) in kernels:
        ins = finish(a, label, traces)
        out += f'.globl {label}\n.p2align 8\n.type {label},@function\n{label}:\n'
        out += render(ins)
    out += '.section .rodata,"a"\n'
    for (label, a, traces, grid, block, lds, nv, acc) in kernels:
        out += '.p2align 6\n' + kernel_desc(label, nv, acc)
    open(path, 'w').write(out)


if __name__ == '__main__':
    if len(sys.argv) > 2 and sys.argv[2] == 'stamps':
        STAMPS = True
        import gen
        gen.STAMPS = True
        EXP = set(sys.argv[3:])
        gen.EXP = EXP
    ks = []
    ks.append(('k1_kernel', gen_k1(), {'A': gen_k1('A'), 'B': gen_k1('B')}, 256, 256, K1_LDS, 360, 256))
    import gen23
    ks += gen23.kernels()
    path = sys.argv[1] if len(sys.argv) > 1 else 'cdna_kernels/%s.s' % NAME
    build(ks, path)
    print('wrote', path)
```

```python
import sys
sys.path.insert(0, 'tools')
from asmlib import *
from gen import *
import gen

K2_STAGE = 24576
K2_NS = 3
K2_LKV = 0
K2_RING = 3072
K2_LDS = K2_RING + K2_NS * K2_STAGE
K2_THR = 50.0

Q1 = 132
Q2 = 136
MN = 16
S0 = 32
S1 = 48
PP = 64
OA_ = 72
KF = 88
VF = 104
PHQ = 120
TMP = 140
CUR = 5
NXT = 180


def k2_prologue(a):
    a('s_cmp_ge_u32 s2, 256')
    a('s_cbranch_scc1 K2_END')
    a('s_load_dwordx2 s[40:41], s[0:1], 80')
    a('s_and_b32 s42, s2, 7')
    a('s_lshr_b32 s43, s2, 3')
    a('s_lshl_b32 s42, s42, 2')
    a('s_and_b32 s44, s43, 3')
    a('s_add_u32 s20, s42, s44')
    a('s_lshr_b32 s21, s43, 2')
    a('v_lshrrev_b32 v11, 6, v0')
    a('v_mov_b32 v15, v0')
    a('v_and_b32 v0, 63, v0')
    a('v_readfirstlane_b32 s23, v11')
    a('s_waitcnt lgkmcnt(0)')
    srd(a, 12, 40, 41, G_WS())
    a('s_mul_i32 s42, s20, 98304')
    a('s_mul_i32 s43, s23, 3')
    for j in range(3):
        a(f's_add_u32 s44, s43, {j}')
        a(f's_lshl_b32 s{27+j}, s44, 10')
        a(f's_add_u32 s{27+j}, s{27+j}, {K2_RING}')
        a('s_cmp_lt_u32 s44, 12')
        a(f's_mov_b32 s45, {VA - 12288}')
        a(f's_cselect_b32 s45, {KA}, s45')
        a(f's_lshl_b32 s44, s44, 10')
        a('s_add_u32 s45, s45, s44')
        a(f's_add_u32 s{24+j}, s45, s42')
    a('v_lshlrev_b32 v1, 4, v0')


def k2_dma(a, slot_sgpr_or_imm):
    for j in range(3):
        a(f's_add_u32 m0, s{27+j}, {slot_sgpr_or_imm}')
        a(f'buffer_load_dwordx4 v1, s[12:15], s{24+j} offen lds')
        a(f's_add_u32 s{24+j}, s{24+j}, 12288')


def k2_setup(a):
    k2_dma(a, 0)
    k2_dma(a, K2_STAGE)
    a('s_mul_i32 s42, s20, 53760')
    a(f's_add_u32 s42, s42, {KVP}')
    a('v_lshlrev_b32 v14, 3, v15')
    a('v_cmp_gt_u32 vcc, 420, v15')
    a('s_and_saveexec_b64 s[52:53], vcc')
    for i in range(16):
        a(f'buffer_load_dwordx2 {vr(TMP+2*i,2)}, v14, s[12:15], s42 offen offset:{0}' if i == 0 else
          f'buffer_load_dwordx2 {vr(TMP+2*i,2)}, v14, s[12:15], s42 offen')
        a('s_add_u32 s42, s42, 3360')
    a('s_mov_b64 exec, s[52:53]')
    a('v_and_b32 v11, 31, v0')
    a('v_lshrrev_b32 v12, 5, v0')
    a('s_lshl_b32 s42, s20, 11')
    a('s_lshl_b32 s43, s21, 8')
    a('s_add_u32 s42, s42, s43')
    a('s_lshl_b32 s43, s23, 5')
    a('s_add_u32 s46, s42, s43')
    a('v_add_u32 v13, s46, v11')
    a('v_mul_u32_u24 v14, 48, v13')
    a('v_lshl_add_u32 v8, v12, 4, v14')
    a(f'buffer_load_dwordx4 {vr(TMP+32,4)}, v8, s[12:15], 0 offen')
    a('v_lshl_add_u32 v8, v12, 3, v14')
    a(f'buffer_load_dwordx2 {vr(TMP+36,2)}, v8, s[12:15], 0 offen offset:32')
    a('v_lshlrev_b32 v8, 2, v13')
    a(f's_mov_b32 s43, {QN}')
    a(f'buffer_load_dword v{TMP+38}, v8, s[12:15], s43 offen')
    a('s_lshl_b32 s43, s20, 8')
    a(f's_add_u32 s43, s43, {KMAX}')
    a('v_lshlrev_b32 v8, 2, v0')
    a(f'buffer_load_dword v{TMP+39}, v8, s[12:15], s43 offen')
    a('v_mul_u32_u24 v14, 80, v13')
    a(f's_mov_b32 s43, {PHIQ}')
    a('v_lshl_add_u32 v8, v12, 4, v14')
    a(f'buffer_load_dwordx4 {vr(PHQ,4)}, v8, s[12:15], s43 offen')
    a(f'buffer_load_dwordx4 {vr(PHQ+4,4)}, v8, s[12:15], s43 offen offset:32')
    a('v_lshl_add_u32 v8, v12, 3, v14')
    a(f'buffer_load_dwordx2 {vr(PHQ+8,2)}, v8, s[12:15], s43 offen offset:64')
    a('v_mul_u32_u24 v14, 48, v11')
    a('v_lshl_add_u32 v2, v12, 4, v14')
    a('v_lshl_add_u32 v3, v12, 3, v14')
    a(f'v_add_u32 v3, {32+K2_RING}, v3')
    a(f'v_add_u32 v2, {K2_RING}, v2')
    a('v_and_b32 v8, 15, v0')
    a('v_lshrrev_b32 v8, 2, v8')
    a('v_lshl_add_u32 v8, v12, 2, v8')
    a('v_mul_u32_u24 v8, 48, v8')
    a('v_bfe_u32 v9, v0, 4, 1')
    a('v_lshl_add_u32 v8, v9, 5, v8')
    a('v_and_b32 v9, 3, v0')
    a('v_lshl_add_u32 v4, v9, 3, v8')
    a(f'v_add_u32 v4, {12288+K2_RING}, v4')
    for i in range(16):
        a(f'v_mov_b32 v{OA_+i}, 0')
    a('s_waitcnt vmcnt(0)')
    for i in range(1, 16):
        a(f'v_add_f32 v{TMP}, v{TMP}, v{TMP+2*i}')
        a(f'v_add_f32 v{TMP+1}, v{TMP+1}, v{TMP+2*i+1}')
    a(f'v_cvt_pk_bf16_f32 v{TMP}, v{TMP}, v{TMP+1}')
    a('v_lshlrev_b32 v14, 2, v15')
    a('v_cmp_gt_u32 vcc, 420, v15')
    a('s_and_saveexec_b64 s[52:53], vcc')
    a(f'ds_write_b32 v14, v{TMP} offset:{K2_LKV}')
    a('s_mov_b64 exec, s[52:53]')
    for i in range(4):
        a(f'v_mov_b32 v{Q1+i}, v{TMP+32+i}')
    for i in range(2):
        a(f'v_mov_b32 v{Q2+i}, v{TMP+36+i}')
    km = TMP + 39
    for sh in (8, 4, 2, 1):
        a(f'v_max_f32_dpp v{km}, v{km}, v{km} row_ror:{sh} row_mask:0xf bank_mask:0xf')
    a(f'v_readlane_b32 s42, v{km}, 0')
    a(f'v_readlane_b32 s43, v{km}, 16')
    a(f'v_readlane_b32 s44, v{km}, 32')
    a(f'v_readlane_b32 s45, v{km}, 48')
    a('s_max_u32 s42, s42, s43')
    a('s_max_u32 s44, s44, s45')
    a('s_max_u32 s42, s42, s44')
    a('v_sqrt_f32 v8, s42')
    a(f'v_mul_f32 v8, v8, v{TMP+38}')
    for i in range(16):
        a(f'v_sub_f32 v{MN+i}, 0, v8')
    a('s_waitcnt lgkmcnt(0)')
    a('s_barrier')


def k2_reads_K(a, kf, a1, a2, off):
    a(f'ds_read_b128 {vr(kf,4)}, v{a1} offset:{off}')
    a(f'ds_read_b64 {vr(kf+4,2)}, v{a2} offset:{off}')


def k2_reads_V(a, vf, av, off):
    for j in range(4):
        a(f'ds_read_b64_tr_b16 {vr(vf+2*j,2)}, v{av} offset:{off+384*j}')


def k2_qk(a, s, kf):
    a(f'v_mfma_f32_32x32x16_bf16 {vr(s,16)}, {vr(kf,4)}, {vr(Q1,4)}, {vr(MN,16)}')
    return f'v_mfma_f32_32x32x8_bf16 {vr(s,16)}, {vr(kf+4,2)}, {vr(Q2,2)}, {vr(s,16)}'


def k2_tile(a, j):
    par = j & 1
    S = S1 if par else S0
    Sn = S0 if par else S1
    kf_next = KF + 8 * (1 - par)
    kf_ld = KF + 8 * par
    vf = VF + 8 * par
    vf_ld = VF + 8 * (1 - par)
    a('s_waitcnt lgkmcnt(0)')
    if j + 2 < 8:
        k2_reads_K(a, kf_ld, CUR, CUR + 1, (j + 2) * 1536)
    else:
        k2_reads_K(a, kf_ld, NXT, NXT + 1, (j + 2 - 8) * 1536)
    if j + 1 < 8:
        k2_reads_V(a, vf_ld, CUR + 2, (j + 1) * 1536)
    else:
        k2_reads_V(a, vf_ld, NXT + 2, 0)
    qk2 = k2_qk(a, Sn, kf_next)
    for i in range(4):
        a(f'v_exp_f32 v{S+i}, v{S+i}')
    a(qk2)
    for i in range(4, 8):
        a(f'v_exp_f32 v{S+i}, v{S+i}')
    for i in range(4):
        a(f'v_cvt_pk_bf16_f32 v{PP+i}, v{S+2*i}, v{S+2*i+1}')
    for i in range(8, 12):
        a(f'v_exp_f32 v{S+i}, v{S+i}')
    a(f'v_mfma_f32_32x32x16_bf16 {vr(OA_,16)}, {vr(vf,4)}, {vr(PP,4)}, {vr(OA_,16)}')
    for i in range(12, 16):
        a(f'v_exp_f32 v{S+i}, v{S+i}')
    for i in range(4, 8):
        a(f'v_cvt_pk_bf16_f32 v{PP+i}, v{S+2*i}, v{S+2*i+1}')
    a('s_nop 1')
    a(f'v_mfma_f32_32x32x16_bf16 {vr(OA_,16)}, {vr(vf+4,4)}, {vr(PP+4,4)}, {vr(OA_,16)}')


def k2_stage(a, first):
    if not first:
        a('s_waitcnt vmcnt(0)')
        a('s_barrier')
    a('s_cmp_ge_u32 s33, 6')
    a('s_cbranch_scc1 K2_NODMA%s' % ('F' if first else ''))
    k2_dma(a, 's32')
    a.label('K2_NODMA%s' % ('F' if first else ''))
    for i in range(3):
        a(f'v_add_u32 v{CUR+i}, s30, v{2+i}')
        a(f'v_add_u32 v{NXT+i}, s31, v{2+i}')
    for j in range(8):
        k2_tile(a, j)
    a('s_mov_b32 s34, s30')
    a('s_mov_b32 s30, s31')
    a('s_mov_b32 s31, s32')
    a('s_mov_b32 s32, s34')
    a('s_add_u32 s33, s33, 1')


def k2_norm_store(a, O, eps, colbyte):
    a(f'v_mov_b32 v8, v{O+8}')
    a(f'v_mov_b32 v9, v{O+8}')
    a('v_permlane32_swap_b32 v8, v9')
    if eps:
        a(f'v_add_f32 v9, {f32bits(1e-6)}, v9')
    a('v_rcp_f32 v9, v9')
    for i in range(12):
        a(f'v_mul_f32 v{O+i}, v9, v{O+i}')
    for i in range(6):
        a(f'v_cvt_pk_bf16_f32 v{TMP+i}, v{O+2*i}, v{O+2*i+1}')
    a(f'buffer_store_dwordx2 {vr(TMP,2)}, v10, s[12:15], s47 offen offset:{colbyte}')
    a(f'buffer_store_dwordx2 {vr(TMP+2,2)}, v10, s[12:15], s47 offen offset:{colbyte+16}')
    a('s_mov_b64 s[52:53], exec')
    a('s_mov_b32 exec_hi, 0')
    a(f'buffer_store_dwordx2 {vr(TMP+4,2)}, v10, s[12:15], s47 offen offset:{colbyte+32}')
    a('s_mov_b64 exec, s[52:53]')


def k2_epilogue(a):
    a('s_waitcnt lgkmcnt(0)')
    a('v_and_b32 v11, 31, v0')
    a('v_lshrrev_b32 v12, 5, v0')
    a('s_lshl_b32 s42, s21, 8')
    a('s_lshl_b32 s43, s23, 5')
    a('s_add_u32 s42, s42, s43')
    a('v_add_u32 v13, s42, v11')
    a('v_mul_u32_u24 v10, 2560, v13')
    a('v_lshl_add_u32 v10, v12, 3, v10')
    a('s_mul_i32 s47, s20, 40')
    a(f's_add_u32 s47, s47, {OO}')
    k2_norm_store(a, OA_, False, 0)
    a('v_mul_u32_u24 v14, 80, v11')
    a('v_lshl_add_u32 v8, v12, 4, v14')
    a('v_lshl_add_u32 v9, v12, 3, v14')
    a(f'ds_read_b128 {vr(KF,4)}, v8 offset:{K2_LKV}')
    a(f'ds_read_b128 {vr(KF+4,4)}, v8 offset:{K2_LKV+32}')
    a(f'ds_read_b64 {vr(KF+8,2)}, v9 offset:{K2_LKV+64}')
    a('s_waitcnt lgkmcnt(0)')
    a(f'v_mfma_f32_32x32x16_bf16 {vr(S0,16)}, {vr(KF,4)}, {vr(PHQ,4)}, 0')
    a(f'v_mfma_f32_32x32x16_bf16 {vr(S0,16)}, {vr(KF+4,4)}, {vr(PHQ+4,4)}, {vr(S0,16)}')
    a(f'v_mfma_f32_32x32x8_bf16 {vr(S0,16)}, {vr(KF+8,2)}, {vr(PHQ+8,2)}, {vr(S0,16)}')
    k2_norm_store(a, S0, True, 1280)


def gen_k2(trace=False):
    a = Asm()
    stamp(a, 0)
    k2_prologue(a)
    stamp(a, 1)
    k2_setup(a)
    stamp(a, 2)
    a('s_mov_b32 s30, 0')
    a(f's_mov_b32 s31, {K2_STAGE}')
    a(f's_mov_b32 s32, {2*K2_STAGE}')
    a('s_mov_b32 s33, 0')
    k2_reads_K(a, KF, 2, 3, 0)
    k2_reads_K(a, KF + 8, 2, 3, 1536)
    k2_reads_V(a, VF, 4, 0)
    a('s_waitcnt lgkmcnt(0)')
    a(k2_qk(a, S0, KF))
    k2_stage(a, True)
    if trace:
        k2_stage(a, False)
        k2_stage(a, False)
    else:
        a.label('K2_LOOP')
        k2_stage(a, False)
        a('s_cmp_lt_u32 s33, 8')
        a('s_cbranch_scc1 K2_LOOP')
    stamp(a, 3)
    k2_epilogue(a)
    stamp(a, 4)
    if gen.STAMPS:
        a('s_waitcnt vmcnt(0)')
    stamp(a, 5)
    stamp_flush(a, 1, 6)
    a.label('K2_END')
    a('s_endpgm')
    return a


K3_ST = 5120
K3_NS = 5
K3_WAVE = K3_ST * K3_NS
K3_LDS = 4 * K3_WAVE
K3_ACC = 16
K3_FA = 96


def k3_group(a, s):
    slot = s % K3_NS
    out = []
    for j in range(5):
        out.append([f's_add_u32 m0, s30, {slot*K3_ST + j*1024}',
                    f'buffer_load_dwordx4 v{3+j}, s[8:11], s24 offen lds'])
    for rt in range(4):
        out.append([f'buffer_load_dwordx4 {ar(slot*16+rt*4,4)}, v{8+rt}, s[12:15], s25 offen offset:{64*s}'])
    out.append(['s_add_u32 s24, s24, 40960'])
    return out


def k3_tr(a, s, tt):
    slot = s % K3_NS
    fb = K3_FA + (s & 1) * 20 + tt * 4
    off = slot * K3_ST + tt * 8
    a(f'ds_read_b64_tr_b16 {vr(fb,2)}, v12 offset:{off}')
    a(f'ds_read_b64_tr_b16 {vr(fb+2,2)}, v13 offset:{off}')


def gen_k3(trace=False):
    a = Asm()
    stamp(a, 0)
    a('s_cmp_ge_u32 s2, 256')
    a('s_cbranch_scc1 K3_END')
    a('s_load_dwordx2 s[28:29], s[0:1], 16')
    a('s_load_dwordx2 s[32:33], s[0:1], 48')
    a('s_load_dwordx2 s[36:37], s[0:1], 64')
    a('s_load_dwordx2 s[40:41], s[0:1], 80')
    a('s_and_b32 s42, s2, 7')
    a('s_lshr_b32 s43, s2, 3')
    a('s_lshl_b32 s42, s42, 2')
    a('s_and_b32 s44, s43, 3')
    a('s_add_u32 s20, s42, s44')
    a('s_lshr_b32 s21, s43, 2')
    a('v_lshrrev_b32 v14, 6, v0')
    a('v_and_b32 v0, 63, v0')
    a('v_readfirstlane_b32 s23, v14')
    a('v_and_b32 v1, 15, v0')
    a('v_lshrrev_b32 v2, 4, v0')
    a('s_waitcnt lgkmcnt(0)')
    a('s_cmp_lt_u32 s23, 2')
    a('s_cselect_b32 s42, s28, s32')
    a('s_cselect_b32 s43, s29, s33')
    srd(a, 8, 42, 43, 640 * 1280)
    srd(a, 12, 40, 41, G_WS())
    srd(a, 16, 36, 37, 2048 * 1280)
    a('s_and_b32 s42, s23, 1')
    a('s_mul_i32 s42, s42, 409600')
    a('s_mul_i32 s43, s21, 160')
    a('s_add_u32 s24, s42, s43')
    a(f's_mul_i32 s30, s23, {K3_WAVE}')
    for j in range(5):
        a(f'v_add_u32 v14, {64*j}, v0')
        a('v_mul_u32_u24 v15, 205, v14')
        a('v_lshrrev_b32 v15, 11, v15')
        a('v_mul_u32_u24 v12, 10, v15')
        a('v_sub_u32 v12, v14, v12')
        a('v_lshrrev_b32 v13, 1, v15')
        a('v_and_b32 v13, 4, v13')
        a('v_xor_b32 v15, v15, v13')
        a('v_mul_u32_u24 v15, 1280, v15')
        a(f'v_lshl_add_u32 v{3+j}, v12, 4, v15')
    a('s_lshl_b32 s42, s20, 6')
    a('v_add_u32 v14, s42, v1')
    a('v_mul_u32_u24 v14, 2560, v14')
    a('v_lshl_add_u32 v8, v2, 4, v14')
    for rt in range(1, 4):
        a(f'v_add_u32 v{8+rt}, {rt*16*2560}, v8')
    a('s_mul_i32 s25, s23, 640')
    a(f's_add_u32 s25, s25, {OO}')
    a('v_lshrrev_b32 v14, 2, v1')
    a('v_and_b32 v15, 3, v1')
    a('v_and_b32 v13, 1, v2')
    a('v_lshl_add_u32 v14, v2, 3, v14')
    a('v_lshl_add_u32 v14, v13, 2, v14')
    a('v_xor_b32 v13, 4, v14')
    a('v_mul_u32_u24 v15, 40, v15')
    a('v_mul_u32_u24 v14, 160, v14')
    a('v_mul_u32_u24 v13, 160, v13')
    a('v_add3_u32 v12, v14, v15, s30')
    a('v_add3_u32 v13, v13, v15, s30')
    stamp(a, 1)
    for s in range(5):
        for grp in k3_group(a, s):
            for x in grp:
                a(x)
    for i in range(80):
        a(f'v_mov_b32 v{K3_ACC+i}, 0')
    a('s_lshl_b32 s42, s20, 6')
    a('s_lshl_b32 s43, s23, 4')
    a('s_add_u32 s46, s42, s43')
    a('v_add_lshl_u32 v14, s46, v1, 2')
    a(f's_mov_b32 s43, {GG}')
    a('buffer_load_dword v140, v14, s[12:15], s43 offen')
    a('s_waitcnt vmcnt(37)')
    stamp(a, 2)
    for tt in range(5):
        k3_tr(a, 0, tt)
    for s in range(10):
        if s + 1 < 10:
            issued_hi = min(s + 4, 9)
            rem = 9 * (issued_hi - (s + 1))
            if s + 1 < 4 or (s + 1 == 4):
                rem += 1
            a(f's_waitcnt vmcnt({rem})')
        groups = k3_group(a, s + 5) if s + 5 < 10 else []
        a('s_waitcnt lgkmcnt(0)')
        gi = 0
        for tt in range(5):
            fb = K3_FA + (s & 1) * 20 + tt * 4
            for rt in range(4):
                c = K3_ACC + (tt * 4 + rt) * 4
                a(f'v_mfma_f32_16x16x32_bf16 {vr(c,4)}, {vr(fb,4)}, {ar((s%5)*16+rt*4,4)}, {vr(c,4)}')
            if s + 1 < 10:
                k3_tr(a, s + 1, tt)
            if tt < 5 and gi < len(groups) and gi < 5:
                for x in groups[gi]:
                    a(x)
                gi += 1
        for g in groups[gi:]:
            for x in g:
                a(x)
    stamp(a, 3)
    a('s_barrier')
    a(f's_mul_i32 s42, s23, {4*5*1024}')
    a('v_lshlrev_b32 v14, 4, v0')
    a('v_add_u32 v15, s42, v14')
    for rt in range(4):
        for tt in range(5):
            c = K3_ACC + (tt * 4 + rt) * 4
            a(f'ds_write_b128 v15, {vr(c,4)} offset:{(rt*5+tt)*1024}')
        a('s_waitcnt lgkmcnt(0)')
    a('s_waitcnt lgkmcnt(0)')
    a('s_barrier')
    a(f's_mul_i32 s42, s23, {5*1024}')
    a('v_add_u32 v15, s42, v14')
    R = 16
    a('v_add_u32 v13, 40960, v15')
    for wv in range(4):
        for tt in range(5):
            a(f'ds_read_b128 {vr(R+(wv*5+tt)*4,4)}, v{15 if wv < 2 else 13} offset:{(wv%2)*20480+tt*1024}')
        a('s_waitcnt lgkmcnt(0)')
    a('v_sub_f32 v141, 1.0, v140')
    for i in range(20):
        a(f'v_add_f32 v{R+i}, v{R+i}, v{R+20+i}')
        a(f'v_add_f32 v{R+40+i}, v{R+40+i}, v{R+60+i}')
        a(f'v_mul_f32 v{R+i}, v140, v{R+i}')
        a(f'v_fmac_f32 v{R+i}, v141, v{R+40+i}')
    for j in range(10):
        a(f'v_cvt_pk_bf16_f32 v{R+20+j}, v{R+2*j}, v{R+2*j+1}')
    a('v_add_u32 v14, s46, v1')
    a('v_mul_u32_u24 v14, 1280, v14')
    a('v_mul_u32_u24 v15, 40, v2')
    a('s_mul_i32 s42, s21, 160')
    a('v_add3_u32 v14, v14, v15, s42')
    a(f'buffer_store_dwordx4 {vr(R+20,4)}, v14, s[16:19], 0 offen')
    a(f'buffer_store_dwordx4 {vr(R+24,4)}, v14, s[16:19], 0 offen offset:16')
    a(f'buffer_store_dwordx2 {vr(R+28,2)}, v14, s[16:19], 0 offen offset:32')
    stamp(a, 4)
    if gen.STAMPS:
        a('s_waitcnt vmcnt(0)')
    stamp(a, 5)
    stamp_flush(a, 2, 6)
    a.label('K3_END')
    a('s_endpgm')
    return a


def kernels():
    return [
        ('k2_kernel', gen_k2(), {'t': gen_k2(True)}, 256, 512, K2_LDS, 184, 184),
        ('k3_kernel', gen_k3(), {'t': gen_k3(True)}, 256, 256, K3_LDS, 144 + 80, 144),
    ]
```

```python
import re

REG_RE = re.compile(r'(?<![\w.])([vsa])\[(\d+):(\d+)\]|(?<![\w.])([vsa])(\d+)(?![\w\[])|(?<![\w.])(vcc|exec|m0|scc)(?![\w])')

TRANS = ('v_exp_f32', 'v_log_f32', 'v_rcp_f32', 'v_rsq_f32', 'v_sqrt_f32', 'v_sin_f32', 'v_cos_f32',
         'v_exp_f16', 'v_rcp_iflag_f32')


def regs_of(tok):
    out = []
    for m in REG_RE.finditer(tok):
        if m.group(1):
            for i in range(int(m.group(2)), int(m.group(3)) + 1):
                out.append((m.group(1), i))
        elif m.group(4):
            out.append((m.group(4), int(m.group(5))))
        else:
            n = m.group(6)
            if n == 'vcc':
                out += [('x', 'vcc')]
            elif n == 'exec':
                out += [('x', 'exec')]
            else:
                out.append(('x', n))
    return out


def mfma_passes(op):
    if '32x32x16' in op or '32x32x8' in op:
        return 8
    if '16x16x32' in op or '16x16x16' in op:
        return 4
    if '32x32x4' in op:
        return 16
    if '4x4x4' in op:
        return 2
    raise ValueError(op)


class I:
    __slots__ = ('text', 'op', 'dst', 'src', 'kind', 'srcc', 'passes', 'label', 'dpp', 'note', 'ops', 'lds')

    def __init__(self, text):
        self.text = text
        self.label = None
        self.dst = []
        self.src = []
        self.srcc = []
        self.passes = 0
        self.dpp = False
        self.lds = False
        body = text.split(';')[0].strip()
        if body.endswith(':'):
            self.kind = 'label'
            self.label = body[:-1]
            self.op = ''
            return
        if not body or body.startswith('.'):
            self.kind = 'none'
            self.op = ''
            return
        parts = body.split(None, 1)
        op = parts[0]
        self.op = op
        rest = parts[1] if len(parts) > 1 else ''
        ops = []
        depth = 0
        cur = ''
        for ch in rest:
            if ch == '[':
                depth += 1
            if ch == ']':
                depth -= 1
            if ch == ',' and depth == 0:
                ops.append(cur.strip())
                cur = ''
            else:
                cur += ch
        if cur.strip():
            ops.append(cur.strip())
        self.ops = ops
        R = [regs_of(o) for o in ops]
        flat = lambda L: [r for x in L for r in x]
        if op.startswith('v_mfma'):
            self.kind = 'mfma'
            self.passes = mfma_passes(op)
            self.dst = R[0]
            self.src = flat(R[1:])
            self.srcc = R[3]
        elif op.startswith('v_'):
            self.kind = 'trans' if any(op.startswith(t) for t in TRANS) else 'valu'
            self.dpp = ('_dpp' in op) or ('row_' in rest) or ('quad_perm' in rest)
            if op.startswith('v_permlane'):
                self.dst = flat(R[:2])
                self.src = flat(R[:2])
            elif op.startswith('v_cmp'):
                self.dst = R[0]
                self.src = flat(R[1:])
            elif op.startswith(('v_add_co', 'v_sub_co', 'v_addc_co', 'v_subb_co', 'v_subrev_co')):
                self.dst = R[0] + R[1]
                self.src = flat(R[2:])
            elif op.startswith(('v_fmac', 'v_dot2c', 'v_pk_fmac', 'v_writelane')):
                self.dst = R[0]
                self.src = flat(R)
            else:
                self.dst = R[0]
                self.src = flat(R[1:])
                if 'UNUSED_PRESERVE' in rest or op.endswith('_dpp'):
                    self.src = self.src + R[0]
        elif op.startswith('ds_read') or op.startswith('ds_bpermute') or op.startswith('ds_swizzle') or op.startswith('ds_permute'):
            self.kind = 'ds'
            self.dst = R[0]
            self.src = flat(R[1:])
        elif op.startswith('ds_write'):
            self.kind = 'ds'
            self.src = flat(R)
        elif op.startswith('buffer_load') or op.startswith('global_load'):
            self.kind = 'vmem'
            if re.search(r'\blds\b', rest):
                self.lds = True
                self.src = flat(R) + [('x', 'm0')]
            else:
                self.dst = R[0]
                self.src = flat(R[1:])
                if '_d16' in op:
                    self.src = self.src + R[0]
        elif op.startswith('buffer_store') or op.startswith('global_store'):
            self.kind = 'vmem'
            self.src = flat(R)
        elif op.startswith('s_load'):
            self.kind = 'smem'
            self.dst = R[0]
            self.src = flat(R[1:])
        elif op.startswith('s_'):
            self.kind = 'salu'
            if op in ('s_waitcnt', 's_barrier', 's_nop', 's_setprio', 's_endpgm', 's_branch', 's_sleep'):
                pass
            elif op.startswith('s_cbranch'):
                pass
            elif op.startswith('s_cmp') or op.startswith('s_bitcmp'):
                self.src = flat(R)
            elif 'saveexec' in op:
                self.dst = R[0] + [('x', 'exec')]
                self.src = flat(R[1:])
            else:
                self.dst = R[0]
                self.src = flat(R[1:])
        else:
            raise ValueError('unknown instr ' + text)

    def states(self):
        if self.kind in ('label', 'none'):
            return 0
        if self.op == 's_nop':
            return int(self.ops[0], 0) + 1
        return 1


def isv(r):
    return r[0] in ('v', 'a')


def iss(r):
    return r[0] == 's' or r == ('x', 'vcc')


class Asm:
    def __init__(self):
        self.ins = []

    def __call__(self, text):
        for line in text.strip('\n').split('\n'):
            if line.strip():
                m = re.search(r'offset:(\d+)', line)
                if m and line.strip().startswith('buffer_'):
                    assert int(m.group(1)) < 4096, line
                if m and line.strip().startswith('ds_'):
                    assert int(m.group(1)) < 65536, line
                self.ins.append(I(line.strip()))

    def label(self, n):
        self.ins.append(I(n + ':'))

    def nop(self, n):
        while n > 0:
            k = min(n, 16)
            self.ins.append(I('s_nop %d' % (k - 1)))
            n -= k


def need_states(prev, cur):
    need = 0
    pk, ck = prev.kind, cur.kind
    pd = set(prev.dst)
    cs = set(cur.src)
    cd = set(cur.dst)
    pvd = {r for r in pd if isv(r)}
    psd = {r for r in pd if iss(r)}
    if pk in ('valu', 'trans'):
        if ck == 'mfma' and pvd & cs:
            need = max(need, 2)
        if pk == 'trans' and ck == 'valu' and pvd & cs:
            need = max(need, 1)
        if ck in ('valu', 'trans') and pvd & cs:
            if cur.dpp or cur.op.startswith('v_permlane'):
                need = max(need, 2)
            if cur.op.startswith(('v_readfirstlane', 'v_readlane')):
                need = max(need, 1)
        if psd:
            if ck in ('valu', 'trans') and psd & cs:
                need = max(need, 4 if cur.op.startswith(('v_readlane', 'v_writelane')) else 2)
            if ck == 'vmem' and psd & cs:
                need = max(need, 5)
            if ck in ('salu', 'smem') and psd & cs:
                need = max(need, 2)
    if prev.op.startswith('v_dot') and cur.op != prev.op and pvd & (cs | cd):
        need = max(need, 3)
    if pk == 'mfma':
        p = prev.passes
        rw = {2: 5, 4: 8, 8: 12, 16: 20}[p]
        if ck in ('valu', 'trans', 'vmem', 'ds'):
            if pvd & (cs | cd):
                need = max(need, rw)
        if ck == 'mfma':
            cc = set(cur.srcc)
            ab = set(cur.src[:len(cur.src) - len(cur.srcc)])
            if pvd & ab:
                need = max(need, rw)
            if pvd & (cc | cd):
                same = (cur.srcc == prev.dst and cur.dst == prev.dst and cur.passes == p)
                if same:
                    need = max(need, 2 if p == 2 else 0)
                else:
                    need = max(need, {2: 4, 4: 6, 8: 10, 16: 18}[p])
        if ck in ('valu', 'trans', 'vmem', 'ds') and set(prev.srcc) & cd:
            need = max(need, {2: 1, 4: 3, 8: 7, 16: 15}[p])
    if pk == 'vmem' and prev.op.startswith(('buffer_store_dwordx3', 'buffer_store_dwordx4', 'global_store_dwordx4')):
        data = set(regs_of(prev.ops[0]))
        if data & cd:
            need = max(need, 2 if ck in ('valu', 'trans') else 1)
    if pk == 'salu' and ('x', 'm0') in pd and cur.lds:
        need = max(need, 1)
    return need


WINDOW = 24


def pad_hazards(ins):
    out = []
    for cur in ins:
        if cur.kind in ('label', 'none') or cur.op == 's_nop':
            out.append(cur)
            continue
        dist = 0
        add = 0
        for prev in reversed(out):
            if dist >= WINDOW:
                break
            if prev.kind in ('label', 'none'):
                continue
            if prev.op != 's_nop':
                n = need_states(prev, cur)
                if n > dist:
                    add = max(add, n - dist)
            dist += prev.states()
        while add > 0:
            k = min(add, 16)
            out.append(I('s_nop %d' % (k - 1)))
            add -= k
        out.append(cur)
    return out


def check_backedges(ins):
    labels = {x.label: i for i, x in enumerate(ins) if x.kind == 'label'}
    errs = []
    for i, x in enumerate(ins):
        if x.op.startswith(('s_cbranch', 's_branch')):
            tgt = x.ops[0]
            if tgt not in labels:
                continue
            j = labels[tgt]
            pre = [y for y in ins[max(0, i - 40):i + 1] if y.kind not in ('label', 'none')]
            post = []
            for y in ins[j:j + 60]:
                if y.kind in ('label', 'none'):
                    continue
                post.append(y)
                if y.op.startswith(('s_branch', 's_endpgm')):
                    break
            seq = pre + post
            for b in range(len(pre), len(seq)):
                cur = seq[b]
                if cur.op == 's_nop':
                    continue
                dist = 0
                for a in range(b - 1, -1, -1):
                    prev = seq[a]
                    if dist >= WINDOW:
                        break
                    if a < len(pre) and prev.op != 's_nop':
                        n = need_states(prev, cur)
                        if n > dist:
                            errs.append('edge %s: %s -> %s needs %d has %d' % (tgt, prev.text, cur.text, n, dist))
                    dist += prev.states()
    return errs


def check_waits(trace, name=''):
    vm = []
    lg = []
    errs = []
    for idx, x in enumerate(trace):
        if x.kind in ('label', 'none'):
            continue
        if x.op == 's_waitcnt':
            t = x.text
            m = re.search(r'vmcnt\((\d+)\)', t)
            if m:
                n = int(m.group(1))
                while len(vm) > n:
                    vm.pop(0)
            m = re.search(r'lgkmcnt\((\d+)\)', t)
            if m:
                n = int(m.group(1))
                if n > 0 and any(k == 'smem' for _, _, k in lg):
                    errs.append('%s[%d] counted lgkmcnt with smem outstanding' % (name, idx))
                while len(lg) > n:
                    lg.pop(0)
            continue
        touched = set(x.src) | set(x.dst)
        for d, t, _ in vm:
            if d & touched:
                errs.append('%s[%d] %s touches pending vm load %s' % (name, idx, x.text, t))
        for d, t, _ in lg:
            if d & touched:
                errs.append('%s[%d] %s touches pending lgkm load %s' % (name, idx, x.text, t))
        if x.kind == 'vmem':
            vm.append((set(x.dst), x.text, 'vm'))
            if len(vm) > 63:
                errs.append('%s[%d] vmcnt overflow' % (name, idx))
        elif x.kind == 'ds':
            lg.append((set(x.dst), x.text, 'ds'))
            if len(lg) > 15:
                errs.append('%s[%d] lgkmcnt overflow >15: %s' % (name, idx, x.text))
                lg.pop(0)
        elif x.kind == 'smem':
            lg.append((set(x.dst), x.text, 'smem'))
    return errs


def render(ins):
    out = []
    for x in ins:
        if x.kind == 'label':
            out.append(x.text)
        else:
            out.append('    ' + x.text)
    return '\n'.join(out) + '\n'
```

```python
import struct
NAME = 'gated_mix__softmax_full_mha__linear_kernel_hedgehog__prompt'
QA = 0
KA = 3145728
VA = 6291456
QN = 9437184
KMAX = 9699328
GG = 9715712
PHIQ = 9723904
KVP = 14966784
OO = 16687104
WP = OO + 2048 * 2560
WS_USED = WP + 1600 * 1024
STAMPS = False
EXP = set()
STAMP_BASE = 24 << 20
LOG2E = 1.4426950408889634
QSCALE = (20 ** -0.5) * LOG2E


def f32bits(x):
    return struct.unpack('<I', struct.pack('<f', x))[0]


def vr(b, n):
    return 'v[%d:%d]' % (b, b + n - 1)


def ar(b, n):
    return 'a[%d:%d]' % (b, b + n - 1)


def G_WS():
    return (32 << 20) if STAMPS else WS_USED


def srd(a, s, lo, hi, size):
    a(f's_mov_b32 s{s}, s{lo}')
    a(f's_and_b32 s{s+1}, s{hi}, 0xffff')
    a(f's_mov_b32 s{s+2}, {size}')
    a(f's_mov_b32 s{s+3}, 0x00020000')


def stamp(a, idx):
    if STAMPS:
        if 'rt' in EXP:
            if idx in (0, 5):
                a(f's_memrealtime s[{88+2*idx}:{89+2*idx}]')
        else:
            a(f's_memtime s[{88+2*idx}:{89+2*idx}]')


def stamp_flush(a, kidx, n, wave_sgpr='s23', srdreg=12):
    if not STAMPS:
        return
    a('s_waitcnt lgkmcnt(0)')
    a('s_lshl_b32 s62, s2, 4')
    a(f's_add_u32 s62, s62, {wave_sgpr}')
    a('s_lshl_b32 s62, s62, 6')
    a(f's_add_u32 s62, s62, {STAMP_BASE + kidx * (1 << 20)}')
    a('v_mov_b32 v1, 0')
    a('s_mov_b64 exec, 1')
    for i in range(n):
        a(f'v_mov_b32 v2, s{88+2*i}')
        a(f'buffer_store_dword v2, v1, s[{srdreg}:{srdreg+3}], s62 offen offset:{4*i}')
    a('s_waitcnt vmcnt(0)')
```

```python
import sys
sys.path.insert(0, 'tools')
from asmlib import *
from common import *
import common

ACC = 16
FR = 80
NB = 8
XF = 112
XS = 30720
STAGE = 47104
NST = 3
WPHI = NST * STAGE
RSC = WPHI + 3200 + 1024
LDS = RSC + 10240
PD = 5
WS = 56
TRB = {0: (9, 10), 1: (160, 161), 2: (162, 163)}
XRB = {0: 15, 1: 164, 2: 165}
XR1 = 166


def acc(u, rt):
    return ACC + (u * 2 + rt) * 4


def prologue(a):
    a('s_cmp_ge_u32 s2, 256')
    a('s_cbranch_scc1 K1_END')
    a('s_load_dwordx4 s[28:31], s[0:1], 0')
    a('s_load_dwordx2 s[34:35], s[0:1], 32')
    a('s_load_dwordx2 s[36:37], s[0:1], 40')
    a('s_load_dwordx2 s[38:39], s[0:1], 56')
    a('s_load_dwordx2 s[40:41], s[0:1], 80')
    a('s_load_dwordx2 s[48:49], s[0:1], 16')
    a('s_load_dwordx2 s[50:51], s[0:1], 48')
    a('s_lshr_b32 s27, s2, 3')
    a('s_bfe_u32 s21, s2, 0x10001')
    a('s_lshl_b32 s21, s21, 3')
    a('s_and_b32 s42, s27, 7')
    a('s_add_u32 s21, s21, s42')
    a('s_and_b32 s20, s2, 1')
    a('s_bfe_u32 s43, s2, 0x10002')
    a('s_lshl_b32 s43, s43, 2')
    a('s_lshr_b32 s22, s27, 3')
    a('s_add_u32 s22, s22, s43')
    a('v_lshrrev_b32 v11, 6, v0')
    a('v_and_b32 v0, 63, v0')
    a('v_readfirstlane_b32 s23, v11')
    a('v_and_b32 v1, 15, v0')
    a('v_lshrrev_b32 v2, 4, v0')
    a('s_and_b32 s24, s23, 3')
    a('s_lshr_b32 s25, s23, 2')
    for q in range(2):
        a(f's_add_u32 s42, s23, {8*q}')
        a(f's_lshl_b32 s{84+q}, s42, 10')
        a(f's_add_u32 s{84+q}, s{84+q}, {XS}')
        a('s_lshl_b32 s42, s42, 3')
        a('v_lshrrev_b32 v11, 3, v0')
        a('v_add_u32 v11, s42, v11')
        a('v_and_b32 v12, 7, v0')
        a('v_and_b32 v13, 7, v11')
        a('v_xor_b32 v12, v12, v13')
        a('s_lshl_b32 s43, s21, 7')
        a('v_add_u32 v11, s43, v11')
        a('v_mul_u32_u24 v11, 1280, v11')
        a(f'v_lshl_add_u32 v{7+q}, v12, 4, v11')
    a('s_mul_i32 s47, s22, 160')
    for q in range(4):
        a(f's_add_u32 s42, s23, {8*q}')
        a('s_min_u32 s42, s42, 29')
        a('s_mul_i32 s43, s42, 205')
        a('s_lshr_b32 s43, s43, 11')
        a(f's_mov_b32 s{76+q}, s43')
        a('s_mul_i32 s44, s43, 10')
        a('s_sub_u32 s44, s42, s44')
        a(f's_lshl_b32 s{80+q}, s42, 10')
        a('s_xor_b32 s45, s43, s20')
        a('s_cmp_eq_u32 s43, 2')
        a('s_cselect_b32 s45, 2, s45')
        a('s_mul_i32 s45, s45, 1280')
        a('s_add_u32 s45, s45, s47')
        a('s_lshl_b32 s44, s44, 6')
        a('v_add_u32 v11, s44, v0')
        a('v_mul_u32_u24 v12, 6554, v11')
        a('v_lshrrev_b32 v12, 16, v12')
        a('v_mul_u32_u24 v13, 10, v12')
        a('v_sub_u32 v13, v11, v13')
        a('v_lshrrev_b32 v11, 1, v12')
        a('v_and_b32 v11, 4, v11')
        a('v_xor_b32 v12, v12, v11')
        a('v_mul_u32_u24 v12, 3840, v12')
        a('v_lshl_add_u32 v12, v13, 4, v12')
        a(f'v_add_u32 v{3+q}, s45, v12')
    a('s_waitcnt lgkmcnt(0)')
    srd(a, 4, 28, 29, 2048 * 1280)
    for q in range(4):
        S = 64 + 4 * q
        a(f's_cmp_eq_u32 s{76+q}, 1')
        a('s_cselect_b32 s42, 1, 0')
        a(f's_lshr_b32 s43, s{76+q}, 1')
        a('s_andn2_b32 s43, s43, s20')
        a('s_or_b32 s42, s42, s43')
        a('s_cmp_lg_u32 s42, 0')
        a(f's_cselect_b32 s{S}, s34, s30')
        a('s_cselect_b32 s46, s35, s31')
        a(f's_and_b32 s{S+1}, s46, 0xffff')
        a(f's_mov_b32 s{S+2}, {640*3840}')
        a(f's_mov_b32 s{S+3}, 0x00020000')


def prologue2(a):
    srd(a, WS, 40, 41, G_WS())
    a('v_lshrrev_b32 v11, 2, v1')
    a('v_and_b32 v12, 3, v1')
    a('v_and_b32 v13, 1, v2')
    a('v_lshl_add_u32 v14, v2, 3, v11')
    a('v_lshl_add_u32 v14, v13, 2, v14')
    a('v_xor_b32 v13, 4, v14')
    a('v_mul_u32_u24 v12, 40, v12')
    a('v_mul_u32_u24 v14, 160, v14')
    a('v_mul_u32_u24 v13, 160, v13')
    a('v_add_u32 v9, v14, v12')
    a('v_add_u32 v10, v13, v12')
    a('v_and_b32 v12, 7, v1')
    a('v_xor_b32 v11, v2, v12')
    a('s_lshl_b32 s42, s24, 5')
    a('v_add_u32 v12, s42, v1')
    a('v_lshlrev_b32 v12, 7, v12')
    a('v_lshl_add_u32 v12, v11, 4, v12')
    a(f'v_add_u32 v15, {XS}, v12')
    a(f'v_xor_b32 v{XR1}, 64, v15')
    for s in (1, 2):
        a(f'v_add_u32 v{TRB[s][0]}, {s*STAGE}, v9')
        a(f'v_add_u32 v{TRB[s][1]}, {s*STAGE}, v10')
        a(f'v_add_u32 v{XRB[s]}, {s*STAGE}, v15')
        a(f'v_add_u32 v{XR1+s}, {s*STAGE}, v{XR1}')
    a('s_lshl_b32 s46, s21, 7')
    a('s_lshl_b32 s42, s24, 5')
    a('s_add_u32 s46, s46, s42')


def issue_group(slot):
    out = []
    for q in range(2):
        out.append([f's_add_u32 m0, s{84+q}, {slot*STAGE}',
                    f'buffer_load_dwordx4 v{7+q}, s[4:7], s87 offen lds'])
    for q in range(4):
        out.append([f's_add_u32 m0, s{80+q}, {slot*STAGE}',
                    f'buffer_load_dwordx4 v{3+q}, s[{64+4*q}:{67+4*q}], s86 offen lds'])
    out.append([f's_add_u32 s86, s86, {64*3840}', 's_add_u32 s87, s87, 128',
                f's_cmp_eq_u32 s87, 1280', 's_cselect_b32 s86, 0, s86', 's_cselect_b32 s87, 0, s87'])
    return out


def frag_list(cs):
    return [(ks, u) for ks in range(2) for u in range(8)]


def tr(a, cs, slot, idx):
    if 'notr' in common.EXP:
        return
    ks, u = divmod(idx, 8)
    t = min(8 * cs + u, 14)
    seg, tt = divmod(t, 5)
    off = seg * 10240 + ks * 5120 + tt * 8
    b = TRB[slot]
    f = FR + 4 * (idx % NB)
    a(f'ds_read_b64_tr_b16 {vr(f,2)}, v{b[0]} offset:{off}')
    a(f'ds_read_b64_tr_b16 {vr(f+2,2)}, v{b[1]} offset:{off}')


def xread(a, slot, xs):
    for ks in range(2):
        b = XRB[slot] if ks == 0 else XR1 + slot
        a(f'ds_read_b128 {vr(XF+xs*16+ks*8,4)}, v{b}')
        a(f'ds_read_b128 {vr(XF+xs*16+ks*8+4,4)}, v{b} offset:2048')


def stage(a, cs, slot, xs, issue, first, last, nextwait):
    if not first:
        a('s_barrier')
    groups = issue_group((slot + 2) % 3) if issue else []
    if issue and slot == 2:
        a('s_cmp_eq_u32 s26, 1')
        for r in (6, 66, 70, 74, 78):
            a(f's_cselect_b32 s{r}, 0, s{r}')

    if 'nodma' in common.EXP:
        groups = []
    gi = 0
    N = 16
    for idx in range(N):
        later = 0
        for d in range(1, PD):
            tn = idx + d
            if tn < N:
                later += 2
            elif not last:
                later += 2
                if tn == N:
                    later += 4
        a(f's_waitcnt lgkmcnt({min(later,15)})')
        ks, u = divmod(idx, 8)
        f = FR + 4 * (idx % NB)
        for rt in range(2):
            c = acc(u, rt)
            if 'nomfma' not in common.EXP:
                a(f'v_mfma_f32_16x16x32_bf16 {vr(c,4)}, {vr(f,4)}, {vr(XF+xs*16+ks*8+rt*4,4)}, {vr(c,4)}')
        tn = idx + PD
        if tn < N:
            tr(a, cs, slot, tn)
        elif not last:
            if tn == N:
                a(f's_waitcnt vmcnt({nextwait})')
                a('s_barrier')
                xread(a, (slot + 1) % 3, (xs + 1) % 3)
            tr(a, cs, (slot + 1) % 3, tn - N)
        if gi < len(groups):
            for s in groups[gi]:
                a(s)
            gi += 1


def main_cs(a, cs, trace=False):
    xread(a, 0, 0)
    for t in range(PD):
        tr(a, cs, 0, t)
    if trace:
        a('s_mov_b32 s26, 3')
        for it in range(3):
            for s in range(3):
                stage(a, cs, s, s, True, False, False, 6)
    else:
        a('s_mov_b32 s26, 3')
        a.label(f'K1_LOOP{cs}')
        for s in range(3):
            stage(a, cs, s, s, True, False, False, 6)
        a('s_sub_u32 s26, s26, 1')
        a('s_cmp_lg_u32 s26, 0')
        a(f's_cbranch_scc1 K1_LOOP{cs}')
    stage(a, cs, 0, 0, False, False, True, 0)
    a('s_waitcnt vmcnt(0)')


PKA = 80
PKB = 100
HV = 120
AW = 144
XB = 194
P = 204
E = 224


def plane_store(a, reg0, nplanes, voff, soff, imm=0):
    for j in range(nplanes):
        a(f'buffer_store_dwordx4 {vr(reg0+4*j,4)}, v{voff}, s[{WS}:{WS+3}], {soff} offen offset:{imm}')
        if j + 1 < nplanes:
            a(f's_add_u32 {soff}, {soff}, 32768')


def lvec(u0, rt):
    return [acc(u0 + tt, rt) + i for tt in range(5) for i in range(4)]


def epi_Aq(a, u0):
    a(f's_mov_b32 s42, {f32bits(QSCALE)}')
    a(f's_mov_b32 s45, {QN}')
    for rt in range(2):
        r = lvec(u0, rt)
        B = PKA if rt == 0 else PKB
        for x in r:
            a(f'v_mul_f32 v{x}, s42, v{x}')
        a(f'v_mul_f32 v8, v{r[0]}, v{r[0]}')
        for x in r[1:]:
            a(f'v_fmac_f32 v8, v{x}, v{x}')
        for j in range(10):
            a(f'v_cvt_pk_bf16_f32 v{B+j}, v{r[2*j]}, v{r[2*j+1]}')
        a(f'v_mov_b32 v{B+10}, 0')
        a(f'v_mov_b32 v{B+11}, 0')
        a(f's_mov_b32 s43, {QA}')
        plane_store(a, B, 3, 5, 's43', rt * 256)
        a('v_sqrt_f32 v8, v8')
        a(f'v_mul_f32 v{B+12}, {f32bits(1.005)}, v8')
        a(f'buffer_store_dword v{B+12}, v6, s[{WS}:{WS+3}], s45 offen offset:{rt*64}')


def epi_Ak(a, u0):
    for rt in range(2):
        r = lvec(u0, rt)
        B = PKA if rt == 0 else PKB
        d = 7 if rt == 0 else 8
        a(f'v_mul_f32 v{d}, v{r[0]}, v{r[0]}')
        for x in r[1:]:
            a(f'v_fmac_f32 v{d}, v{x}, v{x}')
        for j in range(10):
            a(f'v_cvt_pk_bf16_f32 v{B+j}, v{r[2*j]}, v{r[2*j+1]}')
        a(f'v_mov_b32 v{B+10}, 0x3f80')
        a(f'v_mov_b32 v{B+11}, 0')
        a(f's_mov_b32 s43, {KA}')
        plane_store(a, B, 3, 5, 's43', rt * 256)
    a('v_max_f32 v7, v7, v8')
    for sh in (8, 4, 2, 1):
        a(f'v_max_f32_dpp v7, v7, v7 row_ror:{sh} row_mask:0xf bank_mask:0xf')
    a(f'v_mul_f32 v7, {f32bits(1.01)}, v7')
    a('s_lshl_b32 s42, s21, 2')
    a('s_add_u32 s42, s42, s24')
    a('s_lshl_b32 s42, s42, 2')
    a(f's_add_u32 s42, s42, {KMAX}')
    a('v_lshlrev_b32 v11, 8, v14')
    a('v_cmp_eq_u32 vcc, 0, v1')
    a('s_and_saveexec_b64 s[52:53], vcc')
    a(f'buffer_store_dword v7, v11, s[{WS}:{WS+3}], s42 offen')
    a('s_mov_b64 exec, s[52:53]')


def epi_Av(a, u0):
    for rt in range(2):
        r = lvec(u0, rt)
        B = PKA if rt == 0 else PKB
        for j in range(10):
            a(f'v_cvt_pk_bf16_f32 v{B+j}, v{r[2*j]}, v{r[2*j+1]}')
        a(f'v_mov_b32 v{B+10}, 0x3f80')
        a(f'v_mov_b32 v{B+11}, 0')
        a(f's_mov_b32 s43, {VA}')
        plane_store(a, B, 3, 5, 's43', rt * 256)


PHK = 0
VB = 40960
XCH = 65536


def epi_Bv(a, u0):
    for rt in range(2):
        r = lvec(u0, rt)
        B = PKA if rt == 0 else PKB
        for j in range(10):
            a(f'v_cvt_pk_bf16_f32 v{B+j}, v{r[2*j]}, v{r[2*j+1]}')
        a(f'v_mov_b32 v{B+10}, 0x3f80')
        a(f'v_mov_b32 v{B+11}, 0')
        for j in range(3):
            a(f'ds_write_b128 v7, {vr(B+4*j,4)} offset:{VB+rt*768+16*j}')


def load_aw(a):
    a('v_lshrrev_b32 v11, 2, v1')
    a('v_and_b32 v12, 3, v1')
    a('v_mul_u32_u24 v13, 800, v2')
    a('v_mul_u32_u24 v11, 40, v11')
    a('v_add_u32 v13, v13, v11')
    a('v_mov_b32 v11, 3200')
    a('v_cmp_eq_u32 vcc, v12, v2')
    a('v_cndmask_b32 v13, v11, v13, vcc')
    a(f'v_add_u32 v13, {WPHI}, v13')
    cnt = 0
    for tp in range(5):
        for s in range(5):
            a(f'ds_read_b64_tr_b16 {vr(AW+tp*10+2*s,2)}, v13 offset:{4*s*40+8*tp}')
            cnt += 1
            if cnt % 8 == 0:
                a('s_waitcnt lgkmcnt(0)')
    a('s_waitcnt lgkmcnt(0)')


def phi(a, pk):
    for j in range(10):
        a(f'v_cvt_pk_bf16_f32 v{XB+j}, v{HV+2*j}, v{HV+2*j+1}')
    a('s_waitcnt lgkmcnt(0)')
    for tp in range(5):
        a(f'v_mfma_f32_16x16x32_bf16 {vr(P+4*tp,4)}, {vr(AW+tp*10,4)}, {vr(XB,4)}, 0')
    for tp in range(5):
        a(f'v_mfma_f32_16x16x32_bf16 {vr(P+4*tp,4)}, {vr(AW+tp*10+4,4)}, {vr(XB+4,4)}, {vr(P+4*tp,4)}')
    for tp in range(5):
        a(f'v_mfma_f32_16x16x16_bf16 {vr(P+4*tp,4)}, {vr(AW+tp*10+8,2)}, {vr(XB+8,2)}, {vr(P+4*tp,4)}')
    a(f's_mov_b32 s45, {f32bits(LOG2E)}')
    a(f'v_max3_f32 v8, v{P}, v{P+1}, v{P+2}')
    a(f'v_min3_f32 v9, v{P}, v{P+1}, v{P+2}')
    for j in range(3, 19, 2):
        a(f'v_max3_f32 v8, v8, v{P+j}, v{P+j+1}')
        a(f'v_min3_f32 v9, v9, v{P+j}, v{P+j+1}')
    a(f'v_max_f32 v8, v8, v{P+19}')
    a(f'v_min_f32 v9, v9, v{P+19}')
    a('v_mul_f32 v8, s45, v8')
    a('v_mul_f32 v9, s45, v9')
    for j in range(20):
        a(f'v_fma_f32 v{E+j}, -v{P+j}, s45, v9')
        a(f'v_fma_f32 v{P+j}, v{P+j}, s45, -v8')
    for j in range(20):
        a(f'v_exp_f32 v{P+j}, v{P+j}')
        a(f'v_exp_f32 v{E+j}, v{E+j}')
    a(f'v_add_f32 v8, v{P}, v{P+1}')
    a(f'v_add_f32 v9, v{E}, v{E+1}')
    for j in range(2, 20):
        a(f'v_add_f32 v8, v8, v{P+j}')
        a(f'v_add_f32 v9, v9, v{E+j}')
    a('v_rcp_f32 v8, v8')
    a('v_rcp_f32 v9, v9')
    for j in range(20):
        a(f'v_mul_f32 v{P+j}, v8, v{P+j}')
        a(f'v_mul_f32 v{E+j}, v9, v{E+j}')
    for j in range(10):
        a(f'v_cvt_pk_bf16_f32 v{pk+j}, v{P+2*j}, v{P+2*j+1}')
        a(f'v_cvt_pk_bf16_f32 v{pk+10+j}, v{E+2*j}, v{E+2*j+1}')


def common_addr(a):
    a('s_lshl_b32 s42, s22, 2')
    a('v_add_u32 v14, s42, v2')
    a('v_add_u32 v11, s46, v1')
    a('v_mul_u32_u24 v12, 6144, v14')
    a('v_add_lshl_u32 v5, v12, v11, 4')
    a('v_lshl_add_u32 v12, v14, 11, v11')
    a('v_lshlrev_b32 v6, 2, v12')


def exchange(a, cs):
    a('s_mul_i32 s42, s23, 3072')
    a('s_xor_b32 s43, s23, 4')
    a('s_mul_i32 s43, s43, 3072')
    a('v_lshlrev_b32 v11, 4, v0')
    a(f'v_add_u32 v11, {XCH}, v11')
    a('v_add_u32 v12, s42, v11')
    a('v_add_u32 v13, s43, v11')
    if cs == 0:
        for j, u in enumerate((5, 6, 7)):
            a(f'ds_write_b128 v12, {vr(acc(u,1),4)} offset:{j*1024}')
        for j, u in enumerate((5, 6, 7)):
            for i in range(4):
                a(f'v_mov_b32 v{HV+4*j+i}, v{acc(u,0)+i}')
    else:
        for j, u in enumerate((0, 1)):
            a(f'ds_write_b128 v12, {vr(acc(u,0),4)} offset:{j*1024}')
        for j, u in enumerate((0, 1)):
            for i in range(4):
                a(f'v_mov_b32 v{HV+12+4*j+i}, v{acc(u,1)+i}')
    a('s_waitcnt lgkmcnt(0)')
    a('s_barrier')
    if cs == 0:
        for j in range(2):
            a(f'ds_read_b128 {vr(HV+12+4*j,4)}, v13 offset:{j*1024}')
    else:
        for j in range(3):
            a(f'ds_read_b128 {vr(HV+4*j,4)}, v13 offset:{j*1024}')


def kv_part(a):
    a('v_lshrrev_b32 v11, 2, v1')
    a('v_and_b32 v12, 3, v1')
    a('v_lshl_add_u32 v11, v2, 3, v11')
    a('s_lshl_b32 s44, s24, 7')
    a('v_add_u32 v11, s44, v11')
    a('v_mul_u32_u24 v13, 80, v11')
    a('v_lshl_add_u32 v13, v12, 3, v13')
    a('v_mul_u32_u24 v15, 48, v11')
    a('v_lshl_add_u32 v15, v12, 3, v15')
    a('s_lshl_b32 s44, s25, 5')
    a('v_add_u32 v15, s44, v15')
    D = 16
    FA = 32

    def rd(ks):
        f = FA + ks * 16
        for mt in range(3):
            for hh in range(2):
                a(f'ds_read_b64_tr_b16 {vr(f+mt*4+2*hh,2)}, v13 offset:{PHK+(32*ks+4*hh)*80+32*mt}')
        for hh in range(2):
            a(f'ds_read_b64_tr_b16 {vr(f+12+2*hh,2)}, v15 offset:{VB+(32*ks+4*hh)*48}')
    rd(0)
    for ks in range(4):
        f = FA + ks * 16
        if ks + 1 < 4:
            a('s_waitcnt lgkmcnt(1)')
            rd(ks + 1)
            a('s_waitcnt lgkmcnt(8)')
        else:
            a('s_waitcnt lgkmcnt(0)')
        for mt in range(3):
            d = D + mt * 4
            c = '0' if ks == 0 else vr(d, 4)
            a(f'v_mfma_f32_16x16x32_bf16 {vr(d,4)}, {vr(f+mt*4,4)}, {vr(f+12,4)}, {c}')
    a('s_lshl_b32 s42, s22, 2')
    a('s_add_u32 s42, s42, s24')
    a('s_lshl_b32 s42, s42, 4')
    a('s_add_u32 s42, s42, s21')
    a('s_mul_i32 s42, s42, 3360')
    a(f's_add_u32 s42, s42, {KVP}')
    a('s_lshl_b32 s44, s25, 4')
    a('v_add_u32 v12, s44, v1')
    a('v_mul_u32_u24 v11, 160, v12')
    a('v_lshl_add_u32 v11, v2, 4, v11')
    a('v_cmp_gt_u32 s[52:53], 21, v12')
    a('v_cmp_gt_u32 s[54:55], 2, v2')
    a('s_and_b64 s[54:55], s[52:53], s[54:55]')
    for mt in range(3):
        a(f's_mov_b64 exec, {"s[54:55]" if mt == 2 else "s[52:53]"}')
        a(f'buffer_store_dwordx4 {vr(D+mt*4,4)}, v11, s[{WS}:{WS+3}], s42 offen offset:{mt*64}')
    a('s_mov_b64 exec, -1')


def gate(a):
    srd(a, 8, 38, 39, 1280)
    a(f's_mov_b32 s6, {2048*1280}')
    a('s_lshl_b32 s42, s21, 7')
    a('s_lshl_b32 s43, s22, 4')
    a('s_add_u32 s42, s42, s43')
    a('s_lshl_b32 s43, s24, 2')
    a('s_add_u32 s47, s42, s43')
    a('v_add_u32 v11, s47, v2')
    a('v_mul_u32_u24 v12, 80, v1')
    a('v_mul_u32_u24 v13, 1280, v11')
    a('v_add_u32 v13, v13, v12')
    for j in range(5):
        a(f'buffer_load_dwordx4 {vr(P+4*j,4)}, v13, s[4:7], 0 offen offset:{16*j}')
        a(f'buffer_load_dwordx4 {vr(E+4*j,4)}, v12, s[8:11], 0 offen offset:{16*j}')


def gate_finish(a, nafter):
    a(f's_waitcnt vmcnt({nafter})')
    a('v_mov_b32 v8, 0')
    for j in range(20):
        a(f'v_dot2_f32_bf16 v8, v{P+j}, v{E+j}, v8')
    for sh in (8, 4, 2, 1):
        a(f'v_add_f32_dpp v8, v8, v8 row_ror:{sh} row_mask:0xf bank_mask:0xf')
    a(f'v_mul_f32 v8, {f32bits(-LOG2E)}, v8')
    a('v_exp_f32 v8, v8')
    a('v_add_f32 v8, 1.0, v8')
    a('v_rcp_f32 v8, v8')
    a('v_add_lshl_u32 v11, s47, v2, 2')
    a(f's_mov_b32 s43, {GG}')
    a('v_cmp_eq_u32 vcc, 0, v1')
    a('s_and_saveexec_b64 s[52:53], vcc')
    a(f'buffer_store_dword v8, v11, s[{WS}:{WS+3}], s43 offen')
    a('s_mov_b64 exec, s[52:53]')


def epilogue(a, ty, cs):
    a('s_barrier')
    if cs == 0:
        repack_finish(a)
    if ty == 1 and cs == 1:
        gate(a)
    pre2(a)
    common_addr(a)
    exchange(a, cs)
    load_aw(a)
    if ty == 0:
        a('s_lshl_b32 s44, s24, 5')
        a('v_add_u32 v11, s44, v1')
        a('v_lshl_add_u32 v11, v2, 7, v11')
        a('v_mul_u32_u24 v7, 48, v11')
        a(f'v_add_u32 v11, {16*cs}, v11')
        a('v_mul_u32_u24 v13, 80, v11')
        a('v_mov_b32 v3, v13')
        if cs == 0:
            epi_Aq(a, 0)
        else:
            epi_Bv(a, 2)
        phi(a, PKA)
        for j in range(5):
            a(f'ds_write_b128 v3, {vr(PKA+4*j,4)} offset:{PHK+16*j}')
        a('s_waitcnt lgkmcnt(0)')
        a('s_barrier')
        kv_part(a)
    else:
        if cs == 0:
            epi_Ak(a, 0)
        else:
            epi_Av(a, 2)
            gate_finish(a, 6)
        phi(a, PKA)
        a('v_add_u32 v11, s46, v1')
        a(f'v_add_u32 v11, {16*cs}, v11')
        a('v_mul_u32_u24 v12, 10240, v14')
        a('v_add_lshl_u32 v7, v12, v11, 4')
        a(f's_mov_b32 s43, {PHIQ}')
        plane_store(a, PKA, 5, 7, 's43')


def repack_issue(a):
    a('s_mov_b32 s60, 0')
    a('s_cmp_ge_u32 s23, 2')
    a('s_cbranch_scc1 K1_NOREP')
    a('s_lshl_b32 s42, s23, 8')
    a('s_add_u32 s42, s42, s2')
    a('s_cmp_ge_u32 s42, 320')
    a('s_cbranch_scc1 K1_NOREP')
    a('s_mov_b32 s60, 1')
    a('s_and_b32 s43, s42, 7')
    a('s_lshr_b32 s44, s42, 3')
    a('s_cmp_lt_u32 s44, 20')
    a('s_cselect_b32 s12, s48, s50')
    a('s_cselect_b32 s47, s49, s51')
    a('s_cselect_b32 s45, 0, 20')
    a('s_and_b32 s13, s47, 0xffff')
    a(f's_mov_b32 s14, {640*1280}')
    a('s_mov_b32 s15, 0x00020000')
    a('s_sub_u32 s45, s44, s45')
    a('s_mul_i32 s45, s45, 40960')
    a('s_mul_i32 s47, s43, 160')
    a('s_add_u32 s45, s45, s47')
    a('s_mul_i32 s61, s23, 5120')
    a(f's_add_u32 s61, s61, {RSC}')
    for j in range(5):
        a(f'v_add_u32 v11, {64*j}, v0')
        a('v_mul_u32_u24 v12, 205, v11')
        a('v_lshrrev_b32 v12, 11, v12')
        a('v_mul_u32_u24 v13, 10, v12')
        a('v_sub_u32 v13, v11, v13')
        a('v_mul_u32_u24 v12, 1280, v12')
        a('v_lshl_add_u32 v12, v13, 4, v12')
        a(f's_add_u32 m0, s61, {j*1024}')
        a('buffer_load_dwordx4 v12, s[12:15], s45 offen lds')
    a('s_mul_i32 s47, s43, 40')
    a('s_add_u32 s47, s47, s44')
    a('s_mul_i32 s62, s47, 5120')
    a(f's_add_u32 s62, s62, {WP}')
    a.label('K1_NOREP')


_rp = [0]


def repack_finish(a):
    n = _rp[0]
    _rp[0] += 1
    a('s_cmp_eq_u32 s60, 0')
    a(f's_cbranch_scc1 K1_NOREP2_{n}')
    a('v_and_b32 v11, 15, v0')
    a('v_lshrrev_b32 v12, 4, v0')
    a('v_lshrrev_b32 v13, 2, v11')
    a('v_and_b32 v11, 3, v11')
    a('v_lshl_add_u32 v13, v12, 3, v13')
    a('v_mul_u32_u24 v13, 160, v13')
    a('v_mul_u32_u24 v11, 40, v11')
    a('v_add3_u32 v13, v13, v11, s61')
    a('v_lshlrev_b32 v11, 4, v0')
    a('v_add_u32 v12, 4096, v11')
    for tt in range(5):
        a(f'ds_read_b64_tr_b16 {vr(P+4*tt,2)}, v13 offset:{tt*8}')
        a(f'ds_read_b64_tr_b16 {vr(P+4*tt+2,2)}, v13 offset:{tt*8+640}')
    a('s_waitcnt lgkmcnt(0)')
    for tt in range(5):
        if tt < 4:
            a(f'buffer_store_dwordx4 {vr(P+4*tt,4)}, v11, s[{WS}:{WS+3}], s62 offen offset:{tt*1024}')
        else:
            a(f'buffer_store_dwordx4 {vr(P+4*tt,4)}, v12, s[{WS}:{WS+3}], s62 offen')
    a('s_nop 1')
    a.label(f'K1_NOREP2_{n}')


def prefetch_setup(a):
    a('s_and_b32 s42, s22, 3')
    a('s_lshl_b32 s42, s42, 5')
    a('s_lshl_b32 s43, s21, 7')
    a('s_add_u32 s42, s42, s43')
    a('s_and_b32 s43, s23, 3')
    a('s_lshl_b32 s43, s43, 3')
    a('s_add_u32 s42, s42, s43')
    a('v_lshrrev_b32 v11, 3, v0')
    a('v_add_u32 v11, s42, v11')
    a('v_mul_u32_u24 v11, 1280, v11')
    a('v_and_b32 v12, 7, v0')
    a('v_lshl_add_u32 v11, v12, 7, v11')
    a('v_add_u32 v250, 256, v11')
    a('s_cmp_ge_u32 s23, 6')
    a('s_cselect_b32 s42, 6, 0')
    a('s_sub_u32 s42, s23, s42')
    a('s_lshr_b32 s43, s42, 1')
    a('s_and_b32 s44, s42, 1')
    a('s_xor_b32 s45, s43, s20')
    a('s_cmp_eq_u32 s43, 2')
    a('s_cselect_b32 s45, 2, s45')
    a('s_mul_i32 s45, s45, 1280')
    a('s_mul_i32 s47, s22, 160')
    a('s_add_u32 s45, s45, s47')
    a('s_lshl_b32 s44, s44, 7')
    a('s_add_u32 s63, s45, s44')
    a('s_and_b32 s47, s21, 7')
    a('s_lshl_b32 s47, s47, 6')
    a('s_add_u32 s47, s47, 128')
    a('v_add_u32 v11, s47, v0')
    a('v_mul_u32_u24 v251, 3840, v11')
    a('s_cmp_eq_u32 s43, 1')
    a('s_cselect_b32 s42, 1, 0')
    a('s_lshr_b32 s44, s43, 1')
    a('s_andn2_b32 s44, s44, s20')
    a('s_or_b32 s42, s42, s44')
    a('s_cmp_lg_u32 s42, 0')
    a('s_cselect_b32 s16, s34, s30')
    a('s_cselect_b32 s47, s35, s31')
    a('s_and_b32 s17, s47, 0xffff')
    a(f's_mov_b32 s18, {640*3840}')
    a('s_mov_b32 s19, 0x00020000')


def prefetch_issue():
    return [['buffer_load_dword v248, v251, s[16:19], s63 offen'], ['buffer_load_dword v249, v250, s[4:7], 0 offen']]


def pre(a):
    srd(a, 8, 36, 37, 32 * 800)
    a('s_mul_i32 s42, s22, 3200')
    a('s_lshl_b32 s43, s23, 6')
    a('v_add_u32 v11, s43, v0')
    a('v_lshlrev_b32 v12, 4, v11')
    a('v_add_u32 v13, s42, v12')
    for i in range(4):
        a(f'v_mov_b32 v{244+i}, 0')
    a('v_cmp_gt_u32 vcc, 200, v11')
    a('s_and_saveexec_b64 s[52:53], vcc')
    a(f'buffer_load_dwordx4 {vr(244,4)}, v13, s[8:11], 0 offen')
    a('s_mov_b64 exec, s[52:53]')


def pre2(a):
    a('s_lshl_b32 s43, s23, 6')
    a('v_add_u32 v11, s43, v0')
    a('v_lshlrev_b32 v12, 4, v11')
    a(f'v_add_u32 v12, {WPHI}, v12')
    a('v_cmp_gt_u32 vcc, 256, v11')
    a('s_and_saveexec_b64 s[52:53], vcc')
    a(f'ds_write_b128 v12, {vr(244,4)}')
    a('s_mov_b64 exec, s[52:53]')


def gen(trace=None):
    _rp[0] = 0
    a = Asm()
    stamp(a, 0)
    prologue(a)
    if 'norot' in common.EXP:
        a('s_mov_b32 s86, 0')
        a('s_mov_b32 s87, 0')
    else:
        a('s_getreg_b32 s42, hwreg(HW_REG_XCC_ID)')
        a('s_and_b32 s42, s42, 7')
        a('s_mul_i32 s42, s42, 5')
        a('s_lshr_b32 s42, s42, 2')
        a(f's_mul_i32 s86, s42, {64*3840}')
        a('s_lshl_b32 s87, s42, 7')
    for grp in issue_group(0):
        for s in grp:
            a(s)
    pre(a)
    for grp in issue_group(1):
        for s in grp:
            a(s)
    repack_issue(a)
    prologue2(a)
    for i in range(64):
        a(f'v_mov_b32 v{ACC+i}, 0')
    a('s_cmp_eq_u32 s60, 0')
    a('s_cbranch_scc1 K1_W0')
    a('s_waitcnt vmcnt(12)')
    a('s_branch K1_W1')
    a.label('K1_W0')
    a('s_waitcnt vmcnt(7)')
    a.label('K1_W1')
    a('s_barrier')
    stamp(a, 1)
    if trace is None:
        a('s_cmp_eq_u32 s25, 0')
        a('s_cbranch_scc0 K1_M1')
        for cs in range(2):
            main_cs(a, cs)
            stamp(a, 2)
            stamp(a, 3)
            a('s_cmp_eq_u32 s20, 0')
            a(f's_cbranch_scc0 K1_E{cs}1')
            epilogue(a, 0, cs)
            a('s_branch K1_FIN')
            a.label(f'K1_E{cs}1')
            epilogue(a, 1, cs)
            if cs == 0:
                a('s_branch K1_FIN')
                a.label('K1_M1')
        a.label('K1_FIN')
        stamp(a, 4)
        if common.STAMPS:
            a('s_waitcnt vmcnt(0)')
        stamp(a, 5)
        stamp_flush(a, 0, 6, srdreg=WS)
        a.label('K1_END')
        a('s_endpgm')
    else:
        ty, cs = trace
        main_cs(a, cs, True)
        epilogue(a, ty, cs)
    return a
```

```python
import sys
sys.path.insert(0, 'tools')
from asmlib import *
from common import *
import common

PS = 2048 + 64
HALF = 7 * PS
STAGE = 2 * HALF
NS = 3
LKV = 0
FLG = 2816
PHL = 3072
RING = PHL + 20480
OX = RING
LDS = RING + NS * STAGE
THR = 50.0
NT = 4
NSTG = 8

KVL = 16
S0 = 32
S1 = 48
PP = 64
OA_ = 72
KF = 88
VF = 104
Q1 = 120
Q2 = 124
CUR = 5
NXT = 8
NV = 128


def prologue(a):
    a('s_cmp_ge_u32 s2, 256')
    a('s_cbranch_scc1 K2_END')
    a('s_load_dwordx2 s[40:41], s[0:1], 80')
    a('s_load_dwordx2 s[48:49], s[0:1], 16')
    a('s_load_dwordx2 s[50:51], s[0:1], 48')
    a('s_and_b32 s42, s2, 7')
    a('s_lshr_b32 s43, s2, 3')
    a('s_lshl_b32 s42, s42, 2')
    a('s_and_b32 s44, s43, 3')
    a('s_add_u32 s20, s42, s44')
    a('s_lshr_b32 s21, s43, 2')
    if 'map3' in common.EXP:
        a('s_lshr_b32 s20, s2, 3')
        a('s_and_b32 s21, s2, 7')
    a('v_lshrrev_b32 v11, 6, v0')
    a('v_mov_b32 v15, v0')
    a('v_and_b32 v0, 63, v0')
    a('v_readfirstlane_b32 s23, v11')
    a('v_lshlrev_b32 v1, 4, v0')
    a('s_and_b32 s22, s23, 7')
    a('s_lshr_b32 s35, s23, 3')
    a('s_mul_i32 s42, s20, 98304')
    a('s_lshl_b32 s43, s35, 14')
    a('s_add_u32 s42, s42, s43')
    a(f's_mul_i32 s57, s35, {HALF}')
    a(f's_add_u32 s57, s57, {RING}')
    for j in range(2):
        a(f's_add_u32 s44, s22, {8*j}')
        a('s_cmp_lt_u32 s44, 6')
        a(f's_mov_b32 s45, {VA}')
        a(f's_cselect_b32 s45, {KA}, s45')
        a('s_lshr_b32 s46, s44, 1')
        a('s_and_b32 s47, s44, 1')
        a(f's_mul_i32 s{27+j}, s46, {PS}')
        a('s_lshl_b32 s47, s47, 10')
        a(f's_add_u32 s{27+j}, s{27+j}, s47')
        a(f's_add_u32 s{27+j}, s{27+j}, s57')
        a('s_cmp_ge_u32 s46, 3')
        a('s_cselect_b32 s44, 3, 0')
        a('s_sub_u32 s46, s46, s44')
        a('s_lshl_b32 s46, s46, 15')
        a('s_add_u32 s45, s45, s46')
        a('s_add_u32 s45, s45, s47')
        a(f's_add_u32 s{24+j}, s45, s42')
    a('s_waitcnt lgkmcnt(0)')
    srd(a, 12, 40, 41, G_WS())


_dma_n = [0]


def dma(a, slot):
    a(f's_add_u32 m0, s27, {slot}')
    a('buffer_load_dwordx4 v1, s[12:15], s24 offen lds')
    a('s_add_u32 s24, s24, 2048')
    n = _dma_n[0]
    _dma_n[0] += 1
    a('s_cmp_ge_u32 s22, 4')
    a(f's_cbranch_scc1 K2_D{n}')
    a(f's_add_u32 m0, s28, {slot}')
    a('buffer_load_dwordx4 v1, s[12:15], s25 offen lds')
    a('s_add_u32 s25, s25, 2048')
    a.label(f'K2_D{n}')


def repack_issue(a):
    a('s_mov_b32 s54, 0')
    a('s_cmp_ge_u32 s23, 2')
    a('s_cbranch_scc1 K2_NOREP')
    a('s_lshl_b32 s42, s23, 8')
    a('s_add_u32 s42, s42, s2')
    a('s_cmp_ge_u32 s42, 320')
    a('s_cbranch_scc1 K2_NOREP')
    a('s_mov_b32 s54, 1')
    a('s_and_b32 s43, s42, 7')
    a('s_lshr_b32 s44, s42, 3')
    a('s_cmp_lt_u32 s44, 20')
    a('s_cselect_b32 s16, s48, s50')
    a('s_cselect_b32 s47, s49, s51')
    a('s_cselect_b32 s45, 0, 20')
    a('s_and_b32 s17, s47, 0xffff')
    a(f's_mov_b32 s18, {640*1280}')
    a('s_mov_b32 s19, 0x00020000')
    a('s_sub_u32 s45, s44, s45')
    a('s_mul_i32 s45, s45, 40960')
    a('s_mul_i32 s58, s43, 160')
    a('s_add_u32 s45, s45, s58')
    a('s_mul_i32 s55, s23, 5120')
    a(f's_add_u32 s55, s55, {RSC}')
    for j in range(5):
        a(f'v_add_u32 v11, {64*j}, v0')
        a('v_mul_u32_u24 v12, 205, v11')
        a('v_lshrrev_b32 v12, 11, v12')
        a('v_mul_u32_u24 v13, 10, v12')
        a('v_sub_u32 v13, v11, v13')
        a('v_mul_u32_u24 v12, 1280, v12')
        a('v_lshl_add_u32 v12, v13, 4, v12')
        a(f's_add_u32 m0, s55, {j*1024}')
        a('buffer_load_dwordx4 v12, s[16:19], s45 offen lds')
    a('s_mul_i32 s58, s43, 40')
    a('s_add_u32 s58, s58, s44')
    a('s_mul_i32 s56, s58, 5120')
    a(f's_add_u32 s56, s56, {WP}')
    a.label('K2_NOREP')


def repack_finish(a):
    a('s_cmp_eq_u32 s54, 0')
    a('s_cbranch_scc1 K2_NOREP2')
    a('v_and_b32 v11, 15, v0')
    a('v_lshrrev_b32 v12, 4, v0')
    a('v_lshrrev_b32 v13, 2, v11')
    a('v_and_b32 v11, 3, v11')
    a('v_lshl_add_u32 v13, v12, 3, v13')
    a('v_mul_u32_u24 v13, 160, v13')
    a('v_mul_u32_u24 v11, 40, v11')
    a('v_add3_u32 v13, v13, v11, s55')
    a('v_add_u32 v14, 4096, v1')
    R = [KVL, KVL + 4, KVL + 8, KVL + 12, PP]
    for tt in range(5):
        a(f'ds_read_b64_tr_b16 {vr(R[tt],2)}, v13 offset:{tt*8}')
        a(f'ds_read_b64_tr_b16 {vr(R[tt]+2,2)}, v13 offset:{tt*8+640}')
    a('s_waitcnt lgkmcnt(0)')
    for tt in range(5):
        if tt < 4:
            a(f'buffer_store_dwordx4 {vr(R[tt],4)}, v1, s[12:15], s56 offen offset:{tt*1024}')
        else:
            a(f'buffer_store_dwordx4 {vr(R[tt],4)}, v14, s[12:15], s56 offen')
    a('s_nop 1')
    a.label('K2_NOREP2')


def setup(a):
    dma(a, 0)
    a('v_and_b32 v11, 31, v0')
    a('v_lshrrev_b32 v12, 5, v0')
    a('s_lshl_b32 s43, s21, 8')
    a('s_lshl_b32 s44, s22, 5')
    a('s_add_u32 s46, s43, s44')
    a('v_add_u32 v13, s46, v11')
    a('s_mul_i32 s42, s20, 98304')
    a('v_lshlrev_b32 v14, 4, v13')
    a('v_lshl_add_u32 v126, v12, 15, v14')
    a(f'buffer_load_dwordx4 {vr(Q1,4)}, v126, s[12:15], s42 offen')
    a('v_lshl_add_u32 v126, v12, 3, v14')
    a('s_add_u32 s43, s42, 65536')
    a(f'buffer_load_dwordx2 {vr(Q2,2)}, v126, s[12:15], s43 offen')
    a('v_lshlrev_b32 v126, 2, v13')
    a('s_lshl_b32 s43, s20, 13')
    a(f's_add_u32 s43, s43, {QN}')
    a(f'buffer_load_dword v{KVL}, v126, s[12:15], s43 offen')
    a('s_lshl_b32 s43, s20, 8')
    a(f's_add_u32 s43, s43, {KMAX}')
    a('v_lshlrev_b32 v126, 2, v0')
    a(f'buffer_load_dword v{KVL+1}, v126, s[12:15], s43 offen')
    dma(a, STAGE)
    a('v_mul_u32_u24 v13, 497, v15')
    a('v_lshrrev_b32 v13, 16, v13')
    a('v_mul_u32_u24 v14, 132, v13')
    a('v_sub_u32 v14, v15, v14')
    a(f'v_mul_u32_u24 v13, {HALF}, v13')
    a('v_lshl_add_u32 v13, v14, 4, v13')
    for i in range(4):
        a(f'v_mov_b32 v{S0+i}, 0')
    a('v_cmp_gt_u32 vcc, 792, v15')
    a('s_and_saveexec_b64 s[52:53], vcc')
    a(f'ds_write_b128 v13, {vr(S0,4)} offset:{RING+6*PS}')
    a('s_mov_b64 exec, s[52:53]')
    a('v_lshlrev_b32 v14, 4, v11')
    a(f'v_mul_u32_u24 v13, {PS}, v12')
    a('v_add3_u32 v2, v14, v13, s57')
    a('v_lshl_add_u32 v3, v12, 3, v14')
    a(f'v_add_u32 v3, {2*PS}, v3')
    a('v_add_u32 v3, s57, v3')
    a('v_and_b32 v13, 15, v0')
    a('v_lshrrev_b32 v13, 2, v13')
    a('v_lshl_add_u32 v13, v12, 2, v13')
    a('v_lshlrev_b32 v13, 4, v13')
    a('v_bfe_u32 v14, v0, 1, 1')
    a('v_bfe_u32 v126, v0, 4, 1')
    a('v_lshl_add_u32 v14, v126, 1, v14')
    a(f'v_mul_u32_u24 v14, {PS}, v14')
    a('v_add_u32 v13, v13, v14')
    a('v_and_b32 v14, 1, v0')
    a('v_lshl_add_u32 v4, v14, 3, v13')
    a(f'v_add_u32 v4, {3*PS}, v4')
    a('v_add_u32 v4, s57, v4')
    for i in range(16):
        a(f'v_mov_b32 v{OA_+i}, 0')
    a('s_waitcnt vmcnt(0)')
    km = KVL + 1
    for sh in (8, 4, 2, 1):
        a(f'v_max_f32_dpp v{km}, v{km}, v{km} row_ror:{sh} row_mask:0xf bank_mask:0xf')
    a(f'v_readlane_b32 s42, v{km}, 0')
    a(f'v_readlane_b32 s43, v{km}, 16')
    a(f'v_readlane_b32 s44, v{km}, 32')
    a(f'v_readlane_b32 s45, v{km}, 48')
    a('s_max_u32 s42, s42, s43')
    a('s_max_u32 s44, s44, s45')
    a('s_max_u32 s42, s42, s44')
    a('v_sqrt_f32 v11, s42')
    a(f'v_mul_f32 v11, v11, v{KVL}')
    a(f'v_cmp_lt_f32 vcc, {f32bits(THR)}, v11')
    a('s_cmp_lg_u64 vcc, 0')
    a('s_cselect_b32 s42, 1, 0')
    a('v_mov_b32 v13, s42')
    a('s_lshl_b32 s43, s23, 2')
    a('v_mov_b32 v14, s43')
    a(f'ds_write_b32 v14, v13 offset:{FLG}')
    a('v_sub_f32 v11, 0, v11')
    a('v_cvt_pk_bf16_f32 v11, v11, v11')
    a('v_and_b32 v11, 0xffff, v11')
    a('s_waitcnt lgkmcnt(0)')
    a('s_barrier')
    a('v_and_b32 v13, 15, v0')
    a('v_lshlrev_b32 v13, 2, v13')
    a(f'ds_read_b32 v14, v13 offset:{FLG}')
    a('s_waitcnt lgkmcnt(0)')
    a('v_cmp_ne_u32 vcc, 0, v14')
    a('s_cmp_lg_u64 vcc, 0')
    a('s_cselect_b32 s59, 1, 0')
    a('s_cbranch_scc1 K2_NOM')
    a('v_cmp_eq_u32 vcc, 1, v12')
    a(f'v_cndmask_b32 v{Q2}, v{Q2}, v11, vcc')
    a.label('K2_NOM')


def late_loads(a, tg=''):
    a('s_mul_i32 s42, s20, 53760')
    a(f's_add_u32 s42, s42, {KVP}')
    a('v_lshlrev_b32 v14, 2, v15')
    a('v_cmp_gt_u32 vcc, 840, v15')
    a('s_and_saveexec_b64 s[52:53], vcc')
    a(f's_cbranch_execz K2_NOKV{tg}')
    for i in range(16):
        a(f'buffer_load_dword v{KVL+i}, v14, s[12:15], s42 offen')
        a('s_add_u32 s42, s42, 3360')
    a.label(f'K2_NOKV{tg}')
    a('s_mov_b64 exec, s[52:53]')
    a('s_mul_i32 s42, s20, 163840')
    a('s_lshl_b32 s43, s21, 12')
    a('s_add_u32 s42, s42, s43')
    a(f's_add_u32 s42, s42, {PHIQ}')
    for j in range(2):
        if j == 1:
            a('s_cmp_ge_u32 s23, 4')
            a(f's_cbranch_scc1 K2_NOPH{tg}')
        a(f's_add_u32 s43, s23, {16*j}')
        a('s_lshr_b32 s44, s43, 2')
        a('s_and_b32 s45, s43, 3')
        a('s_lshl_b32 s47, s44, 15')
        a('s_lshl_b32 s45, s45, 10')
        a('s_add_u32 s47, s47, s45')
        a('s_add_u32 s47, s47, s42')
        a('s_lshl_b32 s44, s43, 10')
        a(f's_add_u32 m0, s44, {PHL}')
        a('buffer_load_dwordx4 v1, s[12:15], s47 offen lds')
    a.label(f'K2_NOPH{tg}')


def kv_sum(a):
    for i in range(1, 16):
        a(f'v_add_f32 v{KVL}, v{KVL}, v{KVL+i}')
    a(f'v_cvt_pk_bf16_f32 v{KVL}, v{KVL}, v{KVL}')
    a('v_lshlrev_b32 v14, 1, v15')
    a('v_cmp_gt_u32 vcc, 840, v15')
    a('s_and_saveexec_b64 s[52:53], vcc')
    a(f'ds_write_b16 v14, v{KVL} offset:{LKV}')
    a('s_mov_b64 exec, s[52:53]')


def reads_K(a, kf, a1, a2, off):
    a(f'ds_read_b128 {vr(kf,4)}, v{a1} offset:{off}')
    a(f'ds_read_b64 {vr(kf+4,2)}, v{a2} offset:{off}')


def reads_V(a, vf, av, off):
    for j in range(4):
        a(f'ds_read_b64_tr_b16 {vr(vf+2*j,2)}, v{av} offset:{off+128*j}')


def qk(a, s, kf):
    a(f'v_mfma_f32_32x32x16_bf16 {vr(s,16)}, {vr(kf,4)}, {vr(Q1,4)}, 0')
    return f'v_mfma_f32_32x32x8_bf16 {vr(s,16)}, {vr(kf+4,2)}, {vr(Q2,2)}, {vr(s,16)}'


def tile(a, j):
    par = j & 1
    S = S1 if par else S0
    Sn = S0 if par else S1
    kf_next = KF + 8 * (1 - par)
    kf_ld = KF + 8 * par
    vf = VF + 8 * par
    vf_ld = VF + 8 * (1 - par)
    if 'prio' in common.EXP:
        a(f's_setprio {NT - 1 - j}')
    a('s_waitcnt lgkmcnt(0)')
    if j + 2 < NT:
        reads_K(a, kf_ld, CUR, CUR + 1, (j + 2) * 512)
    else:
        reads_K(a, kf_ld, NXT, NXT + 1, (j + 2 - NT) * 512)
    if j + 1 < NT:
        reads_V(a, vf_ld, CUR + 2, (j + 1) * 512)
    else:
        reads_V(a, vf_ld, NXT + 2, 0)
    e = lambda i: a(f'v_exp_f32 v{S+i}, v{S+i}')
    c = lambda i: a(f'v_cvt_pk_bf16_f32 v{PP+i}, v{S+2*i}, v{S+2*i+1}')
    qk2 = qk(a, Sn, kf_next)
    for i in range(4):
        e(i)
    a(qk2)
    c(0); c(1)
    for i in range(4, 8):
        e(i)
    c(2); c(3)
    for i in range(8, 12):
        e(i)
    a(f'v_mfma_f32_32x32x16_bf16 {vr(OA_,16)}, {vr(vf,4)}, {vr(PP,4)}, {vr(OA_,16)}')
    c(4); c(5)
    for i in range(12, 16):
        e(i)
    c(6); c(7)
    a('s_nop 1')
    a(f'v_mfma_f32_32x32x16_bf16 {vr(OA_,16)}, {vr(vf+4,4)}, {vr(PP+4,4)}, {vr(OA_,16)}')


SM = 12


def tile_slow(a, j):
    par = j & 1
    S = S1 if par else S0
    Sn = S0 if par else S1
    kf_next = KF + 8 * (1 - par)
    kf_ld = KF + 8 * par
    vf = VF + 8 * par
    vf_ld = VF + 8 * (1 - par)
    a('s_waitcnt lgkmcnt(0)')
    if j + 2 < NT:
        reads_K(a, kf_ld, CUR, CUR + 1, (j + 2) * 512)
    else:
        reads_K(a, kf_ld, NXT, NXT + 1, (j + 2 - NT) * 512)
    if j + 1 < NT:
        reads_V(a, vf_ld, CUR + 2, (j + 1) * 512)
    else:
        reads_V(a, vf_ld, NXT + 2, 0)
    a(qk(a, Sn, kf_next))
    a(f'v_max3_f32 v13, v{S}, v{S+1}, v{S+2}')
    for i in range(3, 15, 2):
        a(f'v_max3_f32 v13, v13, v{S+i}, v{S+i+1}')
    a(f'v_max_f32 v13, v13, v{S+15}')
    a('v_mov_b32 v14, v13')
    a('v_permlane32_swap_b32 v13, v14')
    a('v_max3_f32 v13, v13, v14, v%d' % SM)
    a(f'v_sub_f32 v14, v{SM}, v13')
    a('v_exp_f32 v14, v14')
    a(f'v_mov_b32 v{SM}, v13')
    for i in range(16):
        a(f'v_sub_f32 v{S+i}, v{S+i}, v13')
    for i in range(16):
        a(f'v_exp_f32 v{S+i}, v{S+i}')
    for i in range(8):
        a(f'v_cvt_pk_bf16_f32 v{PP+i}, v{S+2*i}, v{S+2*i+1}')
    for i in range(16):
        a(f'v_mul_f32 v{OA_+i}, v14, v{OA_+i}')
    a(f'v_mfma_f32_32x32x16_bf16 {vr(OA_,16)}, {vr(vf,4)}, {vr(PP,4)}, {vr(OA_,16)}')
    a(f'v_mfma_f32_32x32x16_bf16 {vr(OA_,16)}, {vr(vf+4,4)}, {vr(PP+4,4)}, {vr(OA_,16)}')


def stage(a, kind, slow=False):
    first = kind == 'first'
    tg = 'SL' if slow else ''
    if not first:
        a('s_waitcnt vmcnt(0)')
        if kind == 'second':
            kv_sum(a)
            a('s_waitcnt lgkmcnt(0)')
        a('s_barrier')
        if kind == 'loop':
            a(f's_cmp_ge_u32 s33, {NSTG-2}')
            a(f's_cbranch_scc1 K2_NODMA{tg}')
    dma(a, 's32')
    if kind == 'loop':
        a.label(f'K2_NODMA{tg}')
    if first:
        late_loads(a, tg)
    for i in range(3):
        a(f'v_add_u32 v{CUR+i}, s30, v{2+i}')
        a(f'v_add_u32 v{NXT+i}, s31, v{2+i}')
    for j in range(NT):
        (tile_slow if slow else tile)(a, j)
    a('s_mov_b32 s34, s30')
    a('s_mov_b32 s30, s31')
    a('s_mov_b32 s31, s32')
    a('s_mov_b32 s32, s34')
    a('s_add_u32 s33, s33, 1')


def frag_off(a, dst, k0):
    a(f'v_lshrrev_b32 v126, 5, v{k0}')
    a('v_lshlrev_b32 v126, 10, v126')
    a(f'v_bfe_u32 v127, v{k0}, 3, 2')
    a('v_lshl_add_u32 v126, v127, 8, v126')
    a(f'v_bfe_u32 v127, v{k0}, 2, 1')
    a(f'v_lshl_add_u32 v{dst}, v127, 3, v126')


def norm_store(a, O, eps, kbase, T):
    a(f'v_mov_b32 v126, v{O+8}')
    a(f'v_mov_b32 v127, v{O+8}')
    a('v_permlane32_swap_b32 v126, v127')
    if eps:
        a(f'v_add_f32 v127, {f32bits(1e-6)}, v127')
    a('v_rcp_f32 v9, v127')
    for i in range(12):
        a(f'v_mul_f32 v{O+i}, v9, v{O+i}')
    for i in range(6):
        a(f'v_cvt_pk_bf16_f32 v{T+i}, v{O+2*i}, v{O+2*i+1}')
    for q in range(3):
        a(f'v_add_u32 v13, {kbase + 8*q}, v14')
        frag_off(a, T + 8 + q, 13)
        a(f'v_add_u32 v{T+8+q}, v{T+8+q}, v10')
    a(f'buffer_store_dwordx2 {vr(T,2)}, v{T+8}, s[12:15], s47 offen')
    a(f'buffer_store_dwordx2 {vr(T+2,2)}, v{T+9}, s[12:15], s47 offen')
    a('s_mov_b64 s[52:53], exec')
    a('s_mov_b32 exec_hi, 0')
    a(f'buffer_store_dwordx2 {vr(T+4,2)}, v{T+10}, s[12:15], s47 offen')
    a('s_mov_b64 exec, s[52:53]')


def epilogue(a):
    a(f'v_mov_b32 v{KVL}, v{SM}')
    a('s_lshr_b32 s42, s2, 3')
    a('s_mul_i32 s42, s42, 51200')
    a(f's_add_u32 s42, s42, {WP}')
    a('v_lshlrev_b32 v11, 7, v15')
    a('v_cmp_gt_u32 vcc, 400, v15')
    a('s_and_saveexec_b64 s[52:53], vcc')
    a('s_cbranch_execz K2_NOPF')
    a(f'buffer_load_dword v{KVL+2}, v11, s[12:15], s42 offen')
    a.label('K2_NOPF')
    a('s_mov_b64 exec, s[52:53]')
    a('s_waitcnt lgkmcnt(0)')
    a('s_barrier')
    a('v_and_b32 v11, 31, v0')
    a('v_lshrrev_b32 v12, 5, v0')
    a('v_add_u32 v13, s46, v11')
    a('v_lshrrev_b32 v126, 4, v13')
    a('v_mul_u32_u24 v126, 40960, v126')
    a('v_and_b32 v127, 15, v13')
    a('v_lshl_add_u32 v10, v127, 4, v126')
    a('s_mul_i32 s42, s20, 20')
    a('v_lshlrev_b32 v14, 2, v12')
    a('v_add_u32 v14, s42, v14')
    a(f's_mov_b32 s47, {OO}')
    a('s_mul_i32 s43, s22, 3072')
    a(f'v_add_u32 v8, {OX}, v1')
    a('v_add_u32 v8, s43, v8')
    a('s_cmp_eq_u32 s35, 0')
    a('s_cbranch_scc1 K2_EA')
    for j in range(3):
        a(f'ds_write_b128 v8, {vr(OA_+4*j,4)} offset:{j*1024}')
    a('v_lshrrev_b32 v126, 2, v1')
    a('v_add_u32 v126, s43, v126')
    a(f'ds_write_b32 v126, v{KVL} offset:{OX+24576}')
    a('s_waitcnt lgkmcnt(0)')
    a('s_barrier')
    a('v_mul_u32_u24 v13, 80, v11')
    a('v_lshl_add_u32 v126, v12, 4, v13')
    a('v_lshl_add_u32 v127, v12, 3, v13')
    a(f'ds_read_b128 {vr(KF,4)}, v126 offset:{LKV}')
    a(f'ds_read_b128 {vr(KF+4,4)}, v126 offset:{LKV+32}')
    a(f'ds_read_b64 {vr(KF+8,2)}, v127 offset:{LKV+64}')
    a('s_lshl_b32 s44, s22, 9')
    a('v_lshlrev_b32 v13, 4, v11')
    a('v_add_u32 v13, s44, v13')
    a('v_lshl_add_u32 v126, v12, 12, v13')
    a('v_lshl_add_u32 v127, v12, 3, v13')
    a(f'ds_read_b128 {vr(VF,4)}, v126 offset:{PHL}')
    a(f'ds_read_b128 {vr(VF+4,4)}, v126 offset:{PHL+8192}')
    a(f'ds_read_b64 {vr(VF+8,2)}, v127 offset:{PHL+16384}')
    a('s_waitcnt lgkmcnt(0)')
    a(f'v_mfma_f32_32x32x16_bf16 {vr(S0,16)}, {vr(KF,4)}, {vr(VF,4)}, 0')
    a(f'v_mfma_f32_32x32x16_bf16 {vr(S0,16)}, {vr(KF+4,4)}, {vr(VF+4,4)}, {vr(S0,16)}')
    a(f'v_mfma_f32_32x32x8_bf16 {vr(S0,16)}, {vr(KF+8,2)}, {vr(VF+8,2)}, {vr(S0,16)}')
    norm_store(a, S0, True, 640, S1)
    a('s_branch K2_EE')
    a.label('K2_EA')
    a('s_barrier')
    for j in range(3):
        a(f'ds_read_b128 {vr(S0+4*j,4)}, v8 offset:{j*1024}')
    a('v_lshrrev_b32 v126, 2, v1')
    a('v_add_u32 v126, s43, v126')
    a(f'ds_read_b32 v{KVL+1}, v126 offset:{OX+24576}')
    a('s_waitcnt lgkmcnt(0)')
    a('s_cmp_eq_u32 s59, 0')
    a('s_cbranch_scc1 K2_MRG')
    a(f'v_max_f32 v13, v{KVL}, v{KVL+1}')
    a(f'v_sub_f32 v126, v{KVL}, v13')
    a(f'v_sub_f32 v127, v{KVL+1}, v13')
    a('v_exp_f32 v126, v126')
    a('v_exp_f32 v127, v127')
    for i in range(12):
        a(f'v_mul_f32 v{OA_+i}, v126, v{OA_+i}')
        a(f'v_mul_f32 v{S0+i}, v127, v{S0+i}')
    a.label('K2_MRG')
    for i in range(12):
        a(f'v_add_f32 v{OA_+i}, v{OA_+i}, v{S0+i}')
    norm_store(a, OA_, False, 0, S1)
    a.label('K2_EE')


def gen(trace=False):
    _dma_n[0] = 0
    a = Asm()
    stamp(a, 0)
    prologue(a)
    stamp(a, 1)
    setup(a)
    stamp(a, 2)
    a('s_mov_b32 s30, 0')
    a(f's_mov_b32 s31, {STAGE}')
    a(f's_mov_b32 s32, {2*STAGE}')
    a('s_mov_b32 s33, 0')
    reads_K(a, KF, 2, 3, 0)
    reads_K(a, KF + 8, 2, 3, 512)
    reads_V(a, VF, 4, 0)
    a('s_waitcnt lgkmcnt(0)')
    a(qk(a, S0, KF))
    a(f'v_mov_b32 v{SM}, {f32bits(-3.0e38)}')
    if trace == 'slow':
        stage(a, 'first', True)
        stage(a, 'second', True)
        stage(a, 'loop', True)
    elif trace:
        stage(a, 'first')
        stage(a, 'second')
        stage(a, 'loop')
    else:
        a('s_cmp_lg_u32 s59, 0')
        a('s_cbranch_scc1 K2_SLOW')
        stage(a, 'first')
        stage(a, 'second')
        a.label('K2_LOOP')
        stage(a, 'loop')
        a(f's_cmp_lt_u32 s33, {NSTG}')
        a('s_cbranch_scc1 K2_LOOP')
        a('s_branch K2_DONE')
        a.label('K2_SLOW')
        stage(a, 'first', True)
        stage(a, 'second', True)
        a.label('K2_LOOPSL')
        stage(a, 'loop', True)
        a(f's_cmp_lt_u32 s33, {NSTG}')
        a('s_cbranch_scc1 K2_LOOPSL')
        a.label('K2_DONE')
    stamp(a, 3)
    epilogue(a)
    stamp(a, 4)
    if common.STAMPS:
        a('s_waitcnt vmcnt(0)')
    stamp(a, 5)
    stamp_flush(a, 1, 6)
    a.label('K2_END')
    a('s_endpgm')
    return a
```

```python
import sys
sys.path.insert(0, 'tools')
from asmlib import *
from common import *
import common

ACC = 16
DEPTH = 4
LDS = 81920


def group(s):
    b = (s % DEPTH) * 36
    out = []
    for tt in range(5):
        if tt < 4:
            out.append(f'buffer_load_dwordx4 {ar(b+4*tt,4)}, v1, s[12:15], s24 offen offset:{tt*1024}')
        else:
            out.append(f'buffer_load_dwordx4 {ar(b+4*tt,4)}, v8, s[12:15], s24 offen')
    for rt in range(4):
        out.append(f'buffer_load_dwordx4 {ar(b+20+4*rt,4)}, v{2+rt}, s[12:15], s25 offen')
    out.append('s_add_u32 s24, s24, 5120')
    out.append('s_add_u32 s25, s25, 1024')
    return out


def gen(trace=False):
    a = Asm()
    stamp(a, 0)
    a('s_cmp_ge_u32 s2, 256')
    a('s_cbranch_scc1 K3_END')
    a('s_load_dwordx2 s[36:37], s[0:1], 64')
    a('s_load_dwordx2 s[40:41], s[0:1], 80')
    a('s_and_b32 s42, s2, 7')
    a('s_lshr_b32 s43, s2, 3')
    a('s_lshl_b32 s42, s42, 2')
    a('s_and_b32 s44, s43, 3')
    a('s_add_u32 s20, s42, s44')
    a('s_lshr_b32 s21, s43, 2')
    a('v_lshrrev_b32 v14, 6, v0')
    a('v_and_b32 v0, 63, v0')
    a('v_readfirstlane_b32 s23, v14')
    a('v_lshlrev_b32 v1, 4, v0')
    a('s_waitcnt lgkmcnt(0)')
    srd(a, 12, 40, 41, G_WS())
    srd(a, 16, 36, 37, 2048 * 1280)
    a('s_mul_i32 s42, s21, 40')
    a('s_mul_i32 s43, s23, 10')
    a('s_add_u32 s42, s42, s43')
    a('s_mul_i32 s24, s42, 5120')
    a(f's_add_u32 s24, s24, {WP}')
    a('s_mul_i32 s42, s20, 163840')
    a('s_lshl_b32 s43, s43, 10')
    a('s_add_u32 s25, s42, s43')
    a(f's_add_u32 s25, s25, {OO}')
    a('v_mov_b32 v2, v1')
    a('v_add_u32 v8, 4096, v1')
    for rt in range(1, 4):
        a(f'v_add_u32 v{2+rt}, {rt*40960}, v1')
    stamp(a, 1)
    for x in group(0):
        a(x)
    for i in range(80):
        a(f'v_mov_b32 v{ACC+i}, 0')
    for s in range(1, DEPTH):
        for x in group(s):
            a(x)
    a('v_and_b32 v6, 15, v0')
    a('v_lshrrev_b32 v7, 4, v0')
    a('s_lshl_b32 s42, s20, 6')
    a('s_lshl_b32 s43, s23, 4')
    a('s_add_u32 s46, s42, s43')
    a('v_add_lshl_u32 v14, s46, v6, 2')
    a(f's_mov_b32 s43, {GG}')
    a('buffer_load_dword v100, v14, s[12:15], s43 offen')
    for s in range(10):
        hi = min(s + DEPTH - 1, 9)
        rem = 9 * (hi - s)
        if s <= DEPTH - 1:
            rem += 1
        a(f's_waitcnt vmcnt({rem})')
        if s == 0:
            stamp(a, 2)
        b = (s % DEPTH) * 36
        for tt in range(5):
            for rt in range(4):
                c = ACC + (tt * 4 + rt) * 4
                a(f'v_mfma_f32_16x16x32_bf16 {vr(c,4)}, {ar(b+4*tt,4)}, {ar(b+20+4*rt,4)}, {vr(c,4)}')
        if s + DEPTH < 10:
            for x in group(s + DEPTH):
                a(x)
    stamp(a, 3)
    a('s_mul_i32 s42, s23, 20480')
    a('v_add_u32 v15, s42, v1')
    for rt in range(4):
        for tt in range(5):
            c = ACC + (tt * 4 + rt) * 4
            a(f'ds_write_b128 v15, {vr(c,4)} offset:{(rt*5+tt)*1024}')
        a('s_waitcnt lgkmcnt(0)')
    a('s_barrier')
    a('s_mul_i32 s42, s23, 5120')
    a('v_add_u32 v15, s42, v1')
    a('v_add_u32 v13, 40960, v15')
    R = 16
    for wv in range(4):
        for tt in range(5):
            a(f'ds_read_b128 {vr(R+(wv*5+tt)*4,4)}, v{15 if wv < 2 else 13} offset:{(wv%2)*20480+tt*1024}')
        if wv % 2 == 1:
            a('s_waitcnt lgkmcnt(0)')
    a('v_sub_f32 v101, 1.0, v100')
    for i in range(20):
        a(f'v_add_f32 v{R+i}, v{R+i}, v{R+20+i}')
        a(f'v_add_f32 v{R+40+i}, v{R+40+i}, v{R+60+i}')
        a(f'v_mul_f32 v{R+i}, v100, v{R+i}')
        a(f'v_fmac_f32 v{R+i}, v101, v{R+40+i}')
    for j in range(10):
        a(f'v_cvt_pk_bf16_f32 v{R+20+j}, v{R+2*j}, v{R+2*j+1}')
    a('v_add_u32 v14, s46, v6')
    a('v_mul_u32_u24 v14, 1280, v14')
    a('v_mul_u32_u24 v15, 40, v7')
    a('s_mul_i32 s42, s21, 160')
    a('v_add3_u32 v14, v14, v15, s42')
    a(f'buffer_store_dwordx4 {vr(R+20,4)}, v14, s[16:19], 0 offen')
    a(f'buffer_store_dwordx4 {vr(R+24,4)}, v14, s[16:19], 0 offen offset:16')
    a(f'buffer_store_dwordx2 {vr(R+28,2)}, v14, s[16:19], 0 offen offset:32')
    stamp(a, 4)
    if common.STAMPS:
        a('s_waitcnt vmcnt(0)')
    stamp(a, 5)
    stamp_flush(a, 2, 6)
    a.label('K3_END')
    a('s_endpgm')
    return a
```

```python
import sys
sys.path.insert(0, 'tools')
from asmlib import *
import common
from common import *


def kernel_desc(name, nvgpr, accum, nsgpr=102):
    return f""".amdhsa_kernel {name}
  .amdhsa_next_free_vgpr {nvgpr}
  .amdhsa_next_free_sgpr {nsgpr}
  .amdhsa_accum_offset {accum}
  .amdhsa_group_segment_fixed_size 0
  .amdhsa_kernarg_size 88
  .amdhsa_user_sgpr_count 2
  .amdhsa_user_sgpr_kernarg_segment_ptr 1
  .amdhsa_system_sgpr_workgroup_id_x 1
.end_amdhsa_kernel
"""


def finish(a, name, traces):
    fl = ''
    for f in ('sc0', 'sc1', 'nt'):
        if 'st_' + f in common.EXP:
            fl += ' ' + f
    if fl:
        for x in a.ins:
            if x.op.startswith('buffer_store'):
                x.text = x.text + fl
    ins = pad_hazards(a.ins)
    errs = check_backedges(ins)
    for tn, tr in traces.items():
        errs += check_waits(pad_hazards(tr.ins), name + ':' + str(tn))
    for e in errs[:40]:
        print('ERR', e, file=sys.stderr)
    if errs:
        print('%d errors in %s' % (len(errs), name), file=sys.stderr)
    return ins


def build(kernels, path):
    hdr = open('cdna_kernels/%s.s.ref' % NAME).read().split('\n')
    head = []
    for l in hdr:
        if l.startswith('; @launch') or l.startswith('; Override'):
            continue
        if not l.startswith(';'):
            break
        head.append(l)
    out = '\n'.join(head) + '\n'
    for (label, a, traces, grid, block, lds, nv, acc) in kernels:
        out += f'; @launch kernel={label} grid=({grid},1,1) block=({block},1,1) lds={lds}\n'
    out += '.amdgcn_target "amdgcn-amd-amdhsa--gfx950"\n.text\n'
    for (label, a, traces, grid, block, lds, nv, acc) in kernels:
        ins = finish(a, label, traces)
        out += f'.globl {label}\n.p2align 8\n.type {label},@function\n{label}:\n'
        out += render(ins)
    out += '.section .rodata,"a"\n'
    for (label, a, traces, grid, block, lds, nv, acc) in kernels:
        out += '.p2align 6\n' + kernel_desc(label, nv, acc)
    open(path, 'w').write(out)


if __name__ == '__main__':
    path = sys.argv[1] if len(sys.argv) > 1 else 'cdna_kernels/%s.s' % NAME
    flags = sys.argv[2:]
    if 'stamps' in flags:
        common.STAMPS = True
    common.EXP = set(flags)
    import gen1, gen2, gen3
    ks = [
        ('k1_kernel', gen1.gen(), {(t,c): gen1.gen((t,c)) for t in range(2) for c in range(2)}, 256, 512, gen1.LDS, 256, 256),
        ('k2_kernel', gen2.gen(), {'t': gen2.gen(True), 's': gen2.gen('slow')}, 256, 1024, gen2.LDS, gen2.NV, gen2.NV),
        ('k3_kernel', gen3.gen(), {'t': gen3.gen(True)}, 256, 256, gen3.LDS, 104 + 144, 104),
    ]
    build(ks, path)
    print('wrote', path)
```

```python
import sys
sys.path.insert(0, 'tools')
from asmlib import *
from common import *
import common

ACC = 16
FR = 80
NB = 8
XF = 112
XS = 30720
STAGE = 47104
NST = 3
WPHI = NST * STAGE
RSC = WPHI + 3200 + 1024
LDS = RSC + 10240
PD = 5
WS = 56
TRB = {0: (9, 10), 1: (160, 161), 2: (162, 163)}
XRB = {0: 15, 1: 164, 2: 165}
XR1 = 166


def acc(u, rt):
    return ACC + (u * 2 + rt) * 4


def prologue(a):
    a('s_cmp_ge_u32 s2, 256')
    a('s_cbranch_scc1 K1_END')
    a('s_load_dwordx4 s[28:31], s[0:1], 0')
    a('s_load_dwordx2 s[34:35], s[0:1], 32')
    a('s_load_dwordx2 s[36:37], s[0:1], 40')
    a('s_load_dwordx2 s[38:39], s[0:1], 56')
    a('s_load_dwordx2 s[40:41], s[0:1], 80')
    a('s_load_dwordx2 s[48:49], s[0:1], 16')
    a('s_load_dwordx2 s[50:51], s[0:1], 48')
    a('s_lshr_b32 s27, s2, 3')
    a('s_bfe_u32 s21, s2, 0x10001')
    a('s_lshl_b32 s21, s21, 3')
    a('s_and_b32 s42, s27, 7')
    a('s_add_u32 s21, s21, s42')
    a('s_and_b32 s20, s2, 1')
    a('s_bfe_u32 s43, s2, 0x10002')
    a('s_lshl_b32 s43, s43, 2')
    a('s_lshr_b32 s22, s27, 3')
    a('s_add_u32 s22, s22, s43')
    if 'mapA' in common.EXP:
        a('s_lshr_b32 s21, s27, 1')
        a('s_and_b32 s20, s2, 1')
        a('s_bfe_u32 s22, s2, 0x20001')
        a('s_lshl_b32 s22, s22, 1')
        a('s_and_b32 s42, s27, 1')
        a('s_add_u32 s22, s22, s42')
    if 'mapB' in common.EXP:
        a('s_bfe_u32 s21, s2, 0x20001')
        a('s_lshl_b32 s21, s21, 2')
        a('s_and_b32 s42, s27, 3')
        a('s_add_u32 s21, s21, s42')
        a('s_and_b32 s20, s2, 1')
        a('s_lshr_b32 s22, s27, 2')
    if 'map2' in common.EXP:
        a('s_lshr_b32 s21, s2, 4')
        a('s_and_b32 s20, s2, 1')
        a('s_bfe_u32 s22, s2, 0x30001')
    a('v_lshrrev_b32 v11, 6, v0')
    a('v_and_b32 v0, 63, v0')
    a('v_readfirstlane_b32 s23, v11')
    a('v_and_b32 v1, 15, v0')
    a('v_lshrrev_b32 v2, 4, v0')
    a('s_and_b32 s24, s23, 3')
    a('s_lshr_b32 s25, s23, 2')
    for q in range(2):
        a(f's_add_u32 s42, s23, {8*q}')
        a(f's_lshl_b32 s{84+q}, s42, 10')
        a(f's_add_u32 s{84+q}, s{84+q}, {XS}')
        a('s_lshl_b32 s42, s42, 3')
        a('v_lshrrev_b32 v11, 3, v0')
        a('v_add_u32 v11, s42, v11')
        a('v_and_b32 v12, 7, v0')
        a('v_and_b32 v13, 7, v11')
        a('v_xor_b32 v12, v12, v13')
        a('s_lshl_b32 s43, s21, 7')
        a('v_add_u32 v11, s43, v11')
        a('v_mul_u32_u24 v11, 1280, v11')
        a(f'v_lshl_add_u32 v{7+q}, v12, 4, v11')
    a('s_mul_i32 s47, s22, 160')
    for q in range(4):
        a(f's_add_u32 s42, s23, {8*q}')
        a('s_min_u32 s42, s42, 29')
        a('s_mul_i32 s43, s42, 205')
        a('s_lshr_b32 s43, s43, 11')
        a(f's_mov_b32 s{76+q}, s43')
        a('s_mul_i32 s44, s43, 10')
        a('s_sub_u32 s44, s42, s44')
        a(f's_lshl_b32 s{80+q}, s42, 10')
        a('s_xor_b32 s45, s43, s20')
        a('s_cmp_eq_u32 s43, 2')
        a('s_cselect_b32 s45, 2, s45')
        a('s_mul_i32 s45, s45, 1280')
        a('s_add_u32 s45, s45, s47')
        a('s_lshl_b32 s44, s44, 6')
        a('v_add_u32 v11, s44, v0')
        a('v_mul_u32_u24 v12, 6554, v11')
        a('v_lshrrev_b32 v12, 16, v12')
        a('v_mul_u32_u24 v13, 10, v12')
        a('v_sub_u32 v13, v11, v13')
        a('v_lshrrev_b32 v11, 1, v12')
        a('v_and_b32 v11, 4, v11')
        a('v_xor_b32 v12, v12, v11')
        a('v_mul_u32_u24 v12, 3840, v12')
        a('v_lshl_add_u32 v12, v13, 4, v12')
        a(f'v_add_u32 v{3+q}, s45, v12')
    a('s_waitcnt lgkmcnt(0)')
    srd(a, 4, 28, 29, 2048 * 1280)
    for q in range(4):
        S = 64 + 4 * q
        a(f's_cmp_eq_u32 s{76+q}, 1')
        a('s_cselect_b32 s42, 1, 0')
        a(f's_lshr_b32 s43, s{76+q}, 1')
        a('s_andn2_b32 s43, s43, s20')
        a('s_or_b32 s42, s42, s43')
        a('s_cmp_lg_u32 s42, 0')
        a(f's_cselect_b32 s{S}, s34, s30')
        a('s_cselect_b32 s46, s35, s31')
        a(f's_and_b32 s{S+1}, s46, 0xffff')
        a(f's_mov_b32 s{S+2}, {640*3840}')
        a(f's_mov_b32 s{S+3}, 0x00020000')


def prologue2(a):
    srd(a, WS, 40, 41, G_WS())
    a('v_lshrrev_b32 v11, 2, v1')
    a('v_and_b32 v12, 3, v1')
    a('v_and_b32 v13, 1, v2')
    a('v_lshl_add_u32 v14, v2, 3, v11')
    a('v_lshl_add_u32 v14, v13, 2, v14')
    a('v_xor_b32 v13, 4, v14')
    a('v_mul_u32_u24 v12, 40, v12')
    a('v_mul_u32_u24 v14, 160, v14')
    a('v_mul_u32_u24 v13, 160, v13')
    a('v_add_u32 v9, v14, v12')
    a('v_add_u32 v10, v13, v12')
    a('v_and_b32 v12, 7, v1')
    a('v_xor_b32 v11, v2, v12')
    a('s_lshl_b32 s42, s24, 5')
    a('v_add_u32 v12, s42, v1')
    a('v_lshlrev_b32 v12, 7, v12')
    a('v_lshl_add_u32 v12, v11, 4, v12')
    a(f'v_add_u32 v15, {XS}, v12')
    a(f'v_xor_b32 v{XR1}, 64, v15')
    for s in (1, 2):
        a(f'v_add_u32 v{TRB[s][0]}, {s*STAGE}, v9')
        a(f'v_add_u32 v{TRB[s][1]}, {s*STAGE}, v10')
        a(f'v_add_u32 v{XRB[s]}, {s*STAGE}, v15')
        a(f'v_add_u32 v{XR1+s}, {s*STAGE}, v{XR1}')
    a('s_lshl_b32 s46, s21, 7')
    a('s_lshl_b32 s42, s24, 5')
    a('s_add_u32 s46, s46, s42')


def issue_group(slot):
    out = []
    for q in range(2):
        out.append([f's_add_u32 m0, s{84+q}, {slot*STAGE}',
                    f'buffer_load_dwordx4 v{7+q}, s[4:7], s87 offen lds'])
    for q in range(4):
        out.append([f's_add_u32 m0, s{80+q}, {slot*STAGE}',
                    f'buffer_load_dwordx4 v{3+q}, s[{64+4*q}:{67+4*q}], s86 offen lds'])
    out.append([f's_add_u32 s86, s86, {64*3840}', 's_add_u32 s87, s87, 128',
                f's_cmp_eq_u32 s87, 1280', 's_cselect_b32 s86, 0, s86', 's_cselect_b32 s87, 0, s87'])
    return out


def frag_list(cs):
    return [(ks, u) for ks in range(2) for u in range(8)]


def tr(a, cs, slot, idx):
    if 'notr' in common.EXP:
        return
    ks, u = divmod(idx, 8)
    t = min(8 * cs + u, 14)
    seg, tt = divmod(t, 5)
    off = seg * 10240 + ks * 5120 + tt * 8
    b = TRB[slot]
    f = FR + 4 * (idx % NB)
    a(f'ds_read_b64_tr_b16 {vr(f,2)}, v{b[0]} offset:{off}')
    a(f'ds_read_b64_tr_b16 {vr(f+2,2)}, v{b[1]} offset:{off}')


def xread(a, slot, xs):
    for ks in range(2):
        b = XRB[slot] if ks == 0 else XR1 + slot
        a(f'ds_read_b128 {vr(XF+xs*16+ks*8,4)}, v{b}')
        a(f'ds_read_b128 {vr(XF+xs*16+ks*8+4,4)}, v{b} offset:2048')


def stage(a, cs, slot, xs, issue, first, last, nextwait):
    if not first:
        a('s_barrier')
    groups = issue_group((slot + 2) % 3) if issue else []
    if issue and slot == 2:
        a('s_cmp_eq_u32 s26, 1')
        for r in (6, 66, 70, 74, 78):
            a(f's_cselect_b32 s{r}, 0, s{r}')

    if 'nodma' in common.EXP:
        groups = []
    gi = 0
    N = 16
    for idx in range(N):
        later = 0
        for d in range(1, PD):
            tn = idx + d
            if tn < N:
                later += 2
            elif not last:
                later += 2
                if tn == N:
                    later += 4
        a(f's_waitcnt lgkmcnt({min(later,15)})')
        ks, u = divmod(idx, 8)
        f = FR + 4 * (idx % NB)
        for rt in range(2):
            c = acc(u, rt)
            if 'nomfma' not in common.EXP:
                a(f'v_mfma_f32_16x16x32_bf16 {vr(c,4)}, {vr(f,4)}, {vr(XF+xs*16+ks*8+rt*4,4)}, {vr(c,4)}')
        tn = idx + PD
        if tn < N:
            tr(a, cs, slot, tn)
        elif not last:
            if tn == N:
                a(f's_waitcnt vmcnt({nextwait})')
                a('s_barrier')
                xread(a, (slot + 1) % 3, (xs + 1) % 3)
            tr(a, cs, (slot + 1) % 3, tn - N)
        if gi < len(groups):
            for s in groups[gi]:
                a(s)
            gi += 1


def main_cs(a, cs, trace=False):
    xread(a, 0, 0)
    for t in range(PD):
        tr(a, cs, 0, t)
    if trace:
        a('s_mov_b32 s26, 3')
        for it in range(3):
            for s in range(3):
                stage(a, cs, s, s, True, False, False, 6)
    else:
        a('s_mov_b32 s26, 3')
        a.label(f'K1_LOOP{cs}')
        for s in range(3):
            stage(a, cs, s, s, True, False, False, 6)
        a('s_sub_u32 s26, s26, 1')
        a('s_cmp_lg_u32 s26, 0')
        a(f's_cbranch_scc1 K1_LOOP{cs}')
    stage(a, cs, 0, 0, False, False, True, 0)
    a('s_waitcnt vmcnt(0)')


PKA = 80
PKB = 100
HV = 120
AW = 144
XB = 194
P = 204
E = 224


def plane_store(a, reg0, nplanes, voff, soff, imm=0):
    for j in range(nplanes):
        a(f'buffer_store_dwordx4 {vr(reg0+4*j,4)}, v{voff}, s[{WS}:{WS+3}], {soff} offen offset:{imm}')
        if j + 1 < nplanes:
            a(f's_add_u32 {soff}, {soff}, 32768')


def lvec(u0, rt):
    return [acc(u0 + tt, rt) + i for tt in range(5) for i in range(4)]


def epi_Aq(a, u0):
    a(f's_mov_b32 s42, {f32bits(QSCALE)}')
    a(f's_mov_b32 s45, {QN}')
    for rt in range(2):
        r = lvec(u0, rt)
        B = PKA if rt == 0 else PKB
        for x in r:
            a(f'v_mul_f32 v{x}, s42, v{x}')
        a(f'v_mul_f32 v8, v{r[0]}, v{r[0]}')
        for x in r[1:]:
            a(f'v_fmac_f32 v8, v{x}, v{x}')
        for j in range(10):
            a(f'v_cvt_pk_bf16_f32 v{B+j}, v{r[2*j]}, v{r[2*j+1]}')
        a(f'v_mov_b32 v{B+10}, 0')
        a(f'v_mov_b32 v{B+11}, 0')
        a(f's_mov_b32 s43, {QA}')
        plane_store(a, B, 3, 5, 's43', rt * 256)
        a('v_sqrt_f32 v8, v8')
        a(f'v_mul_f32 v{B+12}, {f32bits(1.005)}, v8')
        a(f'buffer_store_dword v{B+12}, v6, s[{WS}:{WS+3}], s45 offen offset:{rt*64}')


def epi_Ak(a, u0):
    for rt in range(2):
        r = lvec(u0, rt)
        B = PKA if rt == 0 else PKB
        d = 7 if rt == 0 else 8
        a(f'v_mul_f32 v{d}, v{r[0]}, v{r[0]}')
        for x in r[1:]:
            a(f'v_fmac_f32 v{d}, v{x}, v{x}')
        for j in range(10):
            a(f'v_cvt_pk_bf16_f32 v{B+j}, v{r[2*j]}, v{r[2*j+1]}')
        a(f'v_mov_b32 v{B+10}, 0x3f80')
        a(f'v_mov_b32 v{B+11}, 0')
        a(f's_mov_b32 s43, {KA}')
        plane_store(a, B, 3, 5, 's43', rt * 256)
    a('v_max_f32 v7, v7, v8')
    for sh in (8, 4, 2, 1):
        a(f'v_max_f32_dpp v7, v7, v7 row_ror:{sh} row_mask:0xf bank_mask:0xf')
    a(f'v_mul_f32 v7, {f32bits(1.01)}, v7')
    a('s_lshl_b32 s42, s21, 2')
    a('s_add_u32 s42, s42, s24')
    a('s_lshl_b32 s42, s42, 2')
    a(f's_add_u32 s42, s42, {KMAX}')
    a('v_lshlrev_b32 v11, 8, v14')
    a('v_cmp_eq_u32 vcc, 0, v1')
    a('s_and_saveexec_b64 s[52:53], vcc')
    a(f'buffer_store_dword v7, v11, s[{WS}:{WS+3}], s42 offen')
    a('s_mov_b64 exec, s[52:53]')


def epi_Av(a, u0):
    for rt in range(2):
        r = lvec(u0, rt)
        B = PKA if rt == 0 else PKB
        for j in range(10):
            a(f'v_cvt_pk_bf16_f32 v{B+j}, v{r[2*j]}, v{r[2*j+1]}')
        a(f'v_mov_b32 v{B+10}, 0x3f80')
        a(f'v_mov_b32 v{B+11}, 0')
        a(f's_mov_b32 s43, {VA}')
        plane_store(a, B, 3, 5, 's43', rt * 256)


PHK = 0
VB = 40960
XCH = 65536


def epi_Bv(a, u0):
    for rt in range(2):
        r = lvec(u0, rt)
        B = PKA if rt == 0 else PKB
        for j in range(10):
            a(f'v_cvt_pk_bf16_f32 v{B+j}, v{r[2*j]}, v{r[2*j+1]}')
        a(f'v_mov_b32 v{B+10}, 0x3f80')
        a(f'v_mov_b32 v{B+11}, 0')
        for j in range(3):
            a(f'ds_write_b128 v7, {vr(B+4*j,4)} offset:{VB+rt*768+16*j}')


def load_aw(a):
    a('v_lshrrev_b32 v11, 2, v1')
    a('v_and_b32 v12, 3, v1')
    a('v_mul_u32_u24 v13, 800, v2')
    a('v_mul_u32_u24 v11, 40, v11')
    a('v_add_u32 v13, v13, v11')
    a('v_mov_b32 v11, 3200')
    a('v_cmp_eq_u32 vcc, v12, v2')
    a('v_cndmask_b32 v13, v11, v13, vcc')
    a(f'v_add_u32 v13, {WPHI}, v13')
    cnt = 0
    for tp in range(5):
        for s in range(5):
            a(f'ds_read_b64_tr_b16 {vr(AW+tp*10+2*s,2)}, v13 offset:{4*s*40+8*tp}')
            cnt += 1
            if cnt % 8 == 0:
                a('s_waitcnt lgkmcnt(0)')
    a('s_waitcnt lgkmcnt(0)')


def phi(a, pk):
    for j in range(10):
        a(f'v_cvt_pk_bf16_f32 v{XB+j}, v{HV+2*j}, v{HV+2*j+1}')
    a('s_waitcnt lgkmcnt(0)')
    for tp in range(5):
        a(f'v_mfma_f32_16x16x32_bf16 {vr(P+4*tp,4)}, {vr(AW+tp*10,4)}, {vr(XB,4)}, 0')
    for tp in range(5):
        a(f'v_mfma_f32_16x16x32_bf16 {vr(P+4*tp,4)}, {vr(AW+tp*10+4,4)}, {vr(XB+4,4)}, {vr(P+4*tp,4)}')
    for tp in range(5):
        a(f'v_mfma_f32_16x16x16_bf16 {vr(P+4*tp,4)}, {vr(AW+tp*10+8,2)}, {vr(XB+8,2)}, {vr(P+4*tp,4)}')
    a(f's_mov_b32 s45, {f32bits(LOG2E)}')
    a(f'v_max3_f32 v8, v{P}, v{P+1}, v{P+2}')
    a(f'v_min3_f32 v9, v{P}, v{P+1}, v{P+2}')
    for j in range(3, 19, 2):
        a(f'v_max3_f32 v8, v8, v{P+j}, v{P+j+1}')
        a(f'v_min3_f32 v9, v9, v{P+j}, v{P+j+1}')
    a(f'v_max_f32 v8, v8, v{P+19}')
    a(f'v_min_f32 v9, v9, v{P+19}')
    a('v_mul_f32 v8, s45, v8')
    a('v_mul_f32 v9, s45, v9')
    for j in range(20):
        a(f'v_fma_f32 v{E+j}, -v{P+j}, s45, v9')
        a(f'v_fma_f32 v{P+j}, v{P+j}, s45, -v8')
    for j in range(20):
        a(f'v_exp_f32 v{P+j}, v{P+j}')
        a(f'v_exp_f32 v{E+j}, v{E+j}')
    a(f'v_add_f32 v8, v{P}, v{P+1}')
    a(f'v_add_f32 v9, v{E}, v{E+1}')
    for j in range(2, 20):
        a(f'v_add_f32 v8, v8, v{P+j}')
        a(f'v_add_f32 v9, v9, v{E+j}')
    a('v_rcp_f32 v8, v8')
    a('v_rcp_f32 v9, v9')
    for j in range(20):
        a(f'v_mul_f32 v{P+j}, v8, v{P+j}')
        a(f'v_mul_f32 v{E+j}, v9, v{E+j}')
    for j in range(10):
        a(f'v_cvt_pk_bf16_f32 v{pk+j}, v{P+2*j}, v{P+2*j+1}')
        a(f'v_cvt_pk_bf16_f32 v{pk+10+j}, v{E+2*j}, v{E+2*j+1}')


def common_addr(a):
    a('s_lshl_b32 s42, s22, 2')
    a('v_add_u32 v14, s42, v2')
    a('v_add_u32 v11, s46, v1')
    a('v_mul_u32_u24 v12, 6144, v14')
    a('v_add_lshl_u32 v5, v12, v11, 4')
    a('v_lshl_add_u32 v12, v14, 11, v11')
    a('v_lshlrev_b32 v6, 2, v12')


def exchange(a, cs):
    a('s_mul_i32 s42, s23, 3072')
    a('s_xor_b32 s43, s23, 4')
    a('s_mul_i32 s43, s43, 3072')
    a('v_lshlrev_b32 v11, 4, v0')
    a(f'v_add_u32 v11, {XCH}, v11')
    a('v_add_u32 v12, s42, v11')
    a('v_add_u32 v13, s43, v11')
    if cs == 0:
        for j, u in enumerate((5, 6, 7)):
            a(f'ds_write_b128 v12, {vr(acc(u,1),4)} offset:{j*1024}')
        for j, u in enumerate((5, 6, 7)):
            for i in range(4):
                a(f'v_mov_b32 v{HV+4*j+i}, v{acc(u,0)+i}')
    else:
        for j, u in enumerate((0, 1)):
            a(f'ds_write_b128 v12, {vr(acc(u,0),4)} offset:{j*1024}')
        for j, u in enumerate((0, 1)):
            for i in range(4):
                a(f'v_mov_b32 v{HV+12+4*j+i}, v{acc(u,1)+i}')
    a('s_waitcnt lgkmcnt(0)')
    a('s_barrier')
    if cs == 0:
        for j in range(2):
            a(f'ds_read_b128 {vr(HV+12+4*j,4)}, v13 offset:{j*1024}')
    else:
        for j in range(3):
            a(f'ds_read_b128 {vr(HV+4*j,4)}, v13 offset:{j*1024}')


def kv_part(a):
    a('v_lshrrev_b32 v11, 2, v1')
    a('v_and_b32 v12, 3, v1')
    a('v_lshl_add_u32 v11, v2, 3, v11')
    a('s_lshl_b32 s44, s24, 7')
    a('v_add_u32 v11, s44, v11')
    a('v_mul_u32_u24 v13, 80, v11')
    a('v_lshl_add_u32 v13, v12, 3, v13')
    a('v_mul_u32_u24 v15, 48, v11')
    a('v_lshl_add_u32 v15, v12, 3, v15')
    a('s_lshl_b32 s44, s25, 5')
    a('v_add_u32 v15, s44, v15')
    D = 16
    FA = 32

    def rd(ks):
        f = FA + ks * 16
        for mt in range(3):
            for hh in range(2):
                a(f'ds_read_b64_tr_b16 {vr(f+mt*4+2*hh,2)}, v13 offset:{PHK+(32*ks+4*hh)*80+32*mt}')
        for hh in range(2):
            a(f'ds_read_b64_tr_b16 {vr(f+12+2*hh,2)}, v15 offset:{VB+(32*ks+4*hh)*48}')
    rd(0)
    for ks in range(4):
        f = FA + ks * 16
        if ks + 1 < 4:
            a('s_waitcnt lgkmcnt(1)')
            rd(ks + 1)
            a('s_waitcnt lgkmcnt(8)')
        else:
            a('s_waitcnt lgkmcnt(0)')
        for mt in range(3):
            d = D + mt * 4
            c = '0' if ks == 0 else vr(d, 4)
            a(f'v_mfma_f32_16x16x32_bf16 {vr(d,4)}, {vr(f+mt*4,4)}, {vr(f+12,4)}, {c}')
    a('s_lshl_b32 s42, s22, 2')
    a('s_add_u32 s42, s42, s24')
    a('s_lshl_b32 s42, s42, 4')
    a('s_add_u32 s42, s42, s21')
    a('s_mul_i32 s42, s42, 3360')
    a(f's_add_u32 s42, s42, {KVP}')
    a('s_lshl_b32 s44, s25, 4')
    a('v_add_u32 v12, s44, v1')
    a('v_mul_u32_u24 v11, 160, v12')
    a('v_lshl_add_u32 v11, v2, 4, v11')
    a('v_cmp_gt_u32 s[52:53], 21, v12')
    a('v_cmp_gt_u32 s[54:55], 2, v2')
    a('s_and_b64 s[54:55], s[52:53], s[54:55]')
    for mt in range(3):
        a(f's_mov_b64 exec, {"s[54:55]" if mt == 2 else "s[52:53]"}')
        a(f'buffer_store_dwordx4 {vr(D+mt*4,4)}, v11, s[{WS}:{WS+3}], s42 offen offset:{mt*64}')
    a('s_mov_b64 exec, -1')


def gate(a):
    srd(a, 8, 38, 39, 1280)
    a(f's_mov_b32 s6, {2048*1280}')
    a('s_lshl_b32 s42, s21, 7')
    a('s_lshl_b32 s43, s22, 4')
    a('s_add_u32 s42, s42, s43')
    a('s_lshl_b32 s43, s24, 2')
    a('s_add_u32 s47, s42, s43')
    a('v_add_u32 v11, s47, v2')
    a('v_mul_u32_u24 v12, 80, v1')
    a('v_mul_u32_u24 v13, 1280, v11')
    a('v_add_u32 v13, v13, v12')
    for j in range(5):
        a(f'buffer_load_dwordx4 {vr(P+4*j,4)}, v13, s[4:7], 0 offen offset:{16*j}')
        a(f'buffer_load_dwordx4 {vr(E+4*j,4)}, v12, s[8:11], 0 offen offset:{16*j}')


def gate_finish(a, nafter):
    a(f's_waitcnt vmcnt({nafter})')
    a('v_mov_b32 v8, 0')
    for j in range(20):
        a(f'v_dot2_f32_bf16 v8, v{P+j}, v{E+j}, v8')
    for sh in (8, 4, 2, 1):
        a(f'v_add_f32_dpp v8, v8, v8 row_ror:{sh} row_mask:0xf bank_mask:0xf')
    a(f'v_mul_f32 v8, {f32bits(-LOG2E)}, v8')
    a('v_exp_f32 v8, v8')
    a('v_add_f32 v8, 1.0, v8')
    a('v_rcp_f32 v8, v8')
    a('v_add_lshl_u32 v11, s47, v2, 2')
    a(f's_mov_b32 s43, {GG}')
    a('v_cmp_eq_u32 vcc, 0, v1')
    a('s_and_saveexec_b64 s[52:53], vcc')
    a(f'buffer_store_dword v8, v11, s[{WS}:{WS+3}], s43 offen')
    a('s_mov_b64 exec, s[52:53]')


def epilogue(a, ty, cs):
    a('s_barrier')
    if cs == 0:
        repack_finish(a)
    if ty == 1 and cs == 1:
        gate(a)
    pre2(a)
    common_addr(a)
    exchange(a, cs)
    load_aw(a)
    if ty == 0:
        a('s_lshl_b32 s44, s24, 5')
        a('v_add_u32 v11, s44, v1')
        a('v_lshl_add_u32 v11, v2, 7, v11')
        a('v_mul_u32_u24 v7, 48, v11')
        a(f'v_add_u32 v11, {16*cs}, v11')
        a('v_mul_u32_u24 v13, 80, v11')
        a('v_mov_b32 v3, v13')
        if cs == 0:
            epi_Aq(a, 0)
        else:
            epi_Bv(a, 2)
        phi(a, PKA)
        for j in range(5):
            a(f'ds_write_b128 v3, {vr(PKA+4*j,4)} offset:{PHK+16*j}')
        a('s_waitcnt lgkmcnt(0)')
        a('s_barrier')
        kv_part(a)
    else:
        if cs == 0:
            epi_Ak(a, 0)
        else:
            epi_Av(a, 2)
            gate_finish(a, 6)
        phi(a, PKA)
        a('v_add_u32 v11, s46, v1')
        a(f'v_add_u32 v11, {16*cs}, v11')
        a('v_mul_u32_u24 v12, 10240, v14')
        a('v_add_lshl_u32 v7, v12, v11, 4')
        a(f's_mov_b32 s43, {PHIQ}')
        plane_store(a, PKA, 5, 7, 's43')


def repack_issue(a):
    a('s_mov_b32 s60, 0')
    a('s_cmp_ge_u32 s23, 2')
    a('s_cbranch_scc1 K1_NOREP')
    a('s_lshl_b32 s42, s23, 8')
    a('s_add_u32 s42, s42, s2')
    a('s_cmp_ge_u32 s42, 320')
    a('s_cbranch_scc1 K1_NOREP')
    a('s_mov_b32 s60, 1')
    a('s_and_b32 s43, s42, 7')
    a('s_lshr_b32 s44, s42, 3')
    a('s_cmp_lt_u32 s44, 20')
    a('s_cselect_b32 s12, s48, s50')
    a('s_cselect_b32 s47, s49, s51')
    a('s_cselect_b32 s45, 0, 20')
    a('s_and_b32 s13, s47, 0xffff')
    a(f's_mov_b32 s14, {640*1280}')
    a('s_mov_b32 s15, 0x00020000')
    a('s_sub_u32 s45, s44, s45')
    a('s_mul_i32 s45, s45, 40960')
    a('s_mul_i32 s47, s43, 160')
    a('s_add_u32 s45, s45, s47')
    a('s_mul_i32 s61, s23, 5120')
    a(f's_add_u32 s61, s61, {RSC}')
    for j in range(5):
        a(f'v_add_u32 v11, {64*j}, v0')
        a('v_mul_u32_u24 v12, 205, v11')
        a('v_lshrrev_b32 v12, 11, v12')
        a('v_mul_u32_u24 v13, 10, v12')
        a('v_sub_u32 v13, v11, v13')
        a('v_mul_u32_u24 v12, 1280, v12')
        a('v_lshl_add_u32 v12, v13, 4, v12')
        a(f's_add_u32 m0, s61, {j*1024}')
        a('buffer_load_dwordx4 v12, s[12:15], s45 offen lds')
    a('s_mul_i32 s47, s43, 40')
    a('s_add_u32 s47, s47, s44')
    a('s_mul_i32 s62, s47, 5120')
    a(f's_add_u32 s62, s62, {WP}')
    a.label('K1_NOREP')


_rp = [0]


def repack_finish(a):
    n = _rp[0]
    _rp[0] += 1
    a('s_cmp_eq_u32 s60, 0')
    a(f's_cbranch_scc1 K1_NOREP2_{n}')
    a('v_and_b32 v11, 15, v0')
    a('v_lshrrev_b32 v12, 4, v0')
    a('v_lshrrev_b32 v13, 2, v11')
    a('v_and_b32 v11, 3, v11')
    a('v_lshl_add_u32 v13, v12, 3, v13')
    a('v_mul_u32_u24 v13, 160, v13')
    a('v_mul_u32_u24 v11, 40, v11')
    a('v_add3_u32 v13, v13, v11, s61')
    a('v_lshlrev_b32 v11, 4, v0')
    a('v_add_u32 v12, 4096, v11')
    for tt in range(5):
        a(f'ds_read_b64_tr_b16 {vr(P+4*tt,2)}, v13 offset:{tt*8}')
        a(f'ds_read_b64_tr_b16 {vr(P+4*tt+2,2)}, v13 offset:{tt*8+640}')
    a('s_waitcnt lgkmcnt(0)')
    for tt in range(5):
        if tt < 4:
            a(f'buffer_store_dwordx4 {vr(P+4*tt,4)}, v11, s[{WS}:{WS+3}], s62 offen offset:{tt*1024}')
        else:
            a(f'buffer_store_dwordx4 {vr(P+4*tt,4)}, v12, s[{WS}:{WS+3}], s62 offen')
    a('s_nop 1')
    a.label(f'K1_NOREP2_{n}')


def prefetch_setup(a):
    a('s_and_b32 s42, s22, 3')
    a('s_lshl_b32 s42, s42, 5')
    a('s_lshl_b32 s43, s21, 7')
    a('s_add_u32 s42, s42, s43')
    a('s_and_b32 s43, s23, 3')
    a('s_lshl_b32 s43, s43, 3')
    a('s_add_u32 s42, s42, s43')
    a('v_lshrrev_b32 v11, 3, v0')
    a('v_add_u32 v11, s42, v11')
    a('v_mul_u32_u24 v11, 1280, v11')
    a('v_and_b32 v12, 7, v0')
    a('v_lshl_add_u32 v11, v12, 7, v11')
    a('v_add_u32 v250, 256, v11')
    a('s_cmp_ge_u32 s23, 6')
    a('s_cselect_b32 s42, 6, 0')
    a('s_sub_u32 s42, s23, s42')
    a('s_lshr_b32 s43, s42, 1')
    a('s_and_b32 s44, s42, 1')
    a('s_xor_b32 s45, s43, s20')
    a('s_cmp_eq_u32 s43, 2')
    a('s_cselect_b32 s45, 2, s45')
    a('s_mul_i32 s45, s45, 1280')
    a('s_mul_i32 s47, s22, 160')
    a('s_add_u32 s45, s45, s47')
    a('s_lshl_b32 s44, s44, 7')
    a('s_add_u32 s63, s45, s44')
    a('s_and_b32 s47, s21, 7')
    a('s_lshl_b32 s47, s47, 6')
    a('s_add_u32 s47, s47, 128')
    a('v_add_u32 v11, s47, v0')
    a('v_mul_u32_u24 v251, 3840, v11')
    a('s_cmp_eq_u32 s43, 1')
    a('s_cselect_b32 s42, 1, 0')
    a('s_lshr_b32 s44, s43, 1')
    a('s_andn2_b32 s44, s44, s20')
    a('s_or_b32 s42, s42, s44')
    a('s_cmp_lg_u32 s42, 0')
    a('s_cselect_b32 s16, s34, s30')
    a('s_cselect_b32 s47, s35, s31')
    a('s_and_b32 s17, s47, 0xffff')
    a(f's_mov_b32 s18, {640*3840}')
    a('s_mov_b32 s19, 0x00020000')


def prefetch_issue():
    return [['buffer_load_dword v248, v251, s[16:19], s63 offen'], ['buffer_load_dword v249, v250, s[4:7], 0 offen']]


def pre(a):
    srd(a, 8, 36, 37, 32 * 800)
    a('s_mul_i32 s42, s22, 3200')
    a('s_lshl_b32 s43, s23, 6')
    a('v_add_u32 v11, s43, v0')
    a('v_lshlrev_b32 v12, 4, v11')
    a('v_add_u32 v13, s42, v12')
    for i in range(4):
        a(f'v_mov_b32 v{244+i}, 0')
    a('v_cmp_gt_u32 vcc, 200, v11')
    a('s_and_saveexec_b64 s[52:53], vcc')
    a(f'buffer_load_dwordx4 {vr(244,4)}, v13, s[8:11], 0 offen')
    a('s_mov_b64 exec, s[52:53]')


def pre2(a):
    a('s_lshl_b32 s43, s23, 6')
    a('v_add_u32 v11, s43, v0')
    a('v_lshlrev_b32 v12, 4, v11')
    a(f'v_add_u32 v12, {WPHI}, v12')
    a('v_cmp_gt_u32 vcc, 256, v11')
    a('s_and_saveexec_b64 s[52:53], vcc')
    a(f'ds_write_b128 v12, {vr(244,4)}')
    a('s_mov_b64 exec, s[52:53]')


def gen(trace=None):
    _rp[0] = 0
    a = Asm()
    stamp(a, 0)
    prologue(a)
    if 'norot' in common.EXP:
        a('s_mov_b32 s86, 0')
        a('s_mov_b32 s87, 0')
    else:
        a('s_getreg_b32 s42, hwreg(HW_REG_XCC_ID)')
        a('s_and_b32 s42, s42, 7')
        a('s_mul_i32 s42, s42, 5')
        a('s_lshr_b32 s42, s42, 2')
        a(f's_mul_i32 s86, s42, {64*3840}')
        a('s_lshl_b32 s87, s42, 7')
    for grp in issue_group(0):
        for s in grp:
            a(s)
    pre(a)
    for grp in issue_group(1):
        for s in grp:
            a(s)
    repack_issue(a)
    prologue2(a)
    for i in range(64):
        a(f'v_mov_b32 v{ACC+i}, 0')
    a('s_cmp_eq_u32 s60, 0')
    a('s_cbranch_scc1 K1_W0')
    a('s_waitcnt vmcnt(12)')
    a('s_branch K1_W1')
    a.label('K1_W0')
    a('s_waitcnt vmcnt(7)')
    a.label('K1_W1')
    a('s_barrier')
    stamp(a, 1)
    if trace is None:
        a('s_cmp_eq_u32 s25, 0')
        a('s_cbranch_scc0 K1_M1')
        for cs in range(2):
            main_cs(a, cs)
            stamp(a, 2)
            stamp(a, 3)
            a('s_cmp_eq_u32 s20, 0')
            a(f's_cbranch_scc0 K1_E{cs}1')
            epilogue(a, 0, cs)
            a('s_branch K1_FIN')
            a.label(f'K1_E{cs}1')
            epilogue(a, 1, cs)
            if cs == 0:
                a('s_branch K1_FIN')
                a.label('K1_M1')
        a.label('K1_FIN')
        stamp(a, 4)
        if common.STAMPS:
            a('s_waitcnt vmcnt(0)')
        stamp(a, 5)
        stamp_flush(a, 0, 6, srdreg=WS)
        a.label('K1_END')
        a('s_endpgm')
    else:
        ty, cs = trace
        main_cs(a, cs, True)
        epilogue(a, ty, cs)
    return a
```

```python
import sys
sys.path.insert(0, 'tools')
from asmlib import *
from common import *
import common

ACC = 16
DEPTH = 4
LDS = 81920


def group(s):
    b = (s % DEPTH) * 36
    out = []
    for tt in range(5):
        if tt < 4:
            out.append(f'buffer_load_dwordx4 {ar(b+4*tt,4)}, v1, s[12:15], s24 offen offset:{tt*1024}')
        else:
            out.append(f'buffer_load_dwordx4 {ar(b+4*tt,4)}, v8, s[12:15], s24 offen')
    for rt in range(4):
        out.append(f'buffer_load_dwordx4 {ar(b+20+4*rt,4)}, v{2+rt}, s[12:15], s25 offen')
    out.append('s_add_u32 s24, s24, 5120')
    out.append('s_add_u32 s25, s25, 1024')
    return out


def gen(trace=False):
    a = Asm()
    stamp(a, 0)
    a('s_cmp_ge_u32 s2, 256')
    a('s_cbranch_scc1 K3_END')
    a('s_load_dwordx2 s[36:37], s[0:1], 64')
    a('s_load_dwordx2 s[40:41], s[0:1], 80')
    a('s_and_b32 s42, s2, 7')
    a('s_lshr_b32 s43, s2, 3')
    a('s_lshl_b32 s42, s42, 2')
    a('s_and_b32 s44, s43, 3')
    a('s_add_u32 s20, s42, s44')
    a('s_lshr_b32 s21, s43, 2')
    if 'k3A' in common.EXP:
        a('s_bfe_u32 s20, s2, 0x20001')
        a('s_lshl_b32 s20, s20, 3')
        a('s_and_b32 s44, s43, 7')
        a('s_add_u32 s20, s20, s44')
        a('s_and_b32 s21, s2, 1')
        a('s_lshl_b32 s21, s21, 2')
        a('s_lshr_b32 s44, s43, 3')
        a('s_add_u32 s21, s21, s44')
    a('v_lshrrev_b32 v14, 6, v0')
    a('v_and_b32 v0, 63, v0')
    a('v_readfirstlane_b32 s23, v14')
    a('v_lshlrev_b32 v1, 4, v0')
    a('s_waitcnt lgkmcnt(0)')
    srd(a, 12, 40, 41, G_WS())
    srd(a, 16, 36, 37, 2048 * 1280)
    a('s_mul_i32 s42, s21, 40')
    a('s_mul_i32 s43, s23, 10')
    a('s_add_u32 s42, s42, s43')
    a('s_mul_i32 s24, s42, 5120')
    a(f's_add_u32 s24, s24, {WP}')
    a('s_mul_i32 s42, s20, 163840')
    a('s_lshl_b32 s43, s43, 10')
    a('s_add_u32 s25, s42, s43')
    a(f's_add_u32 s25, s25, {OO}')
    a('v_mov_b32 v2, v1')
    a('v_add_u32 v8, 4096, v1')
    for rt in range(1, 4):
        a(f'v_add_u32 v{2+rt}, {rt*40960}, v1')
    stamp(a, 1)
    for x in group(0):
        a(x)
    for i in range(80):
        a(f'v_mov_b32 v{ACC+i}, 0')
    for s in range(1, DEPTH):
        for x in group(s):
            a(x)
    a('v_and_b32 v6, 15, v0')
    a('v_lshrrev_b32 v7, 4, v0')
    a('s_lshl_b32 s42, s20, 6')
    a('s_lshl_b32 s43, s23, 4')
    a('s_add_u32 s46, s42, s43')
    a('v_add_lshl_u32 v14, s46, v6, 2')
    a(f's_mov_b32 s43, {GG}')
    a('buffer_load_dword v100, v14, s[12:15], s43 offen')
    for s in range(10):
        hi = min(s + DEPTH - 1, 9)
        rem = 9 * (hi - s)
        if s <= DEPTH - 1:
            rem += 1
        a(f's_waitcnt vmcnt({rem})')
        if s == 0:
            stamp(a, 2)
        b = (s % DEPTH) * 36
        for tt in range(5):
            for rt in range(4):
                c = ACC + (tt * 4 + rt) * 4
                a(f'v_mfma_f32_16x16x32_bf16 {vr(c,4)}, {ar(b+4*tt,4)}, {ar(b+20+4*rt,4)}, {vr(c,4)}')
        if s + DEPTH < 10:
            for x in group(s + DEPTH):
                a(x)
    stamp(a, 3)
    a('s_mul_i32 s42, s23, 20480')
    a('v_add_u32 v15, s42, v1')
    for rt in range(4):
        for tt in range(5):
            c = ACC + (tt * 4 + rt) * 4
            a(f'ds_write_b128 v15, {vr(c,4)} offset:{(rt*5+tt)*1024}')
        a('s_waitcnt lgkmcnt(0)')
    a('s_barrier')
    a('s_mul_i32 s42, s23, 5120')
    a('v_add_u32 v15, s42, v1')
    a('v_add_u32 v13, 40960, v15')
    R = 16
    for wv in range(4):
        for tt in range(5):
            a(f'ds_read_b128 {vr(R+(wv*5+tt)*4,4)}, v{15 if wv < 2 else 13} offset:{(wv%2)*20480+tt*1024}')
        if wv % 2 == 1:
            a('s_waitcnt lgkmcnt(0)')
    a('v_sub_f32 v101, 1.0, v100')
    for i in range(20):
        a(f'v_add_f32 v{R+i}, v{R+i}, v{R+20+i}')
        a(f'v_add_f32 v{R+40+i}, v{R+40+i}, v{R+60+i}')
        a(f'v_mul_f32 v{R+i}, v100, v{R+i}')
        a(f'v_fmac_f32 v{R+i}, v101, v{R+40+i}')
    for j in range(10):
        a(f'v_cvt_pk_bf16_f32 v{R+20+j}, v{R+2*j}, v{R+2*j+1}')
    a('v_add_u32 v14, s46, v6')
    a('v_mul_u32_u24 v14, 1280, v14')
    a('v_mul_u32_u24 v15, 40, v7')
    a('s_mul_i32 s42, s21, 160')
    a('v_add3_u32 v14, v14, v15, s42')
    a(f'buffer_store_dwordx4 {vr(R+20,4)}, v14, s[16:19], 0 offen')
    a(f'buffer_store_dwordx4 {vr(R+24,4)}, v14, s[16:19], 0 offen offset:16')
    a(f'buffer_store_dwordx2 {vr(R+28,2)}, v14, s[16:19], 0 offen offset:32')
    stamp(a, 4)
    if common.STAMPS:
        a('s_waitcnt vmcnt(0)')
    stamp(a, 5)
    stamp_flush(a, 2, 6)
    a.label('K3_END')
    a('s_endpgm')
    return a
```
